```python
import torch

def _softmax(x, axis=-1):
    return torch.softmax(x, dim=axis)
def _gelu(x):
    return torch.nn.functional.gelu(x, approximate="tanh")
def _silu(x):
    return torch.nn.functional.silu(x)
def _sigmoid(x):
    return torch.sigmoid(x)
def _layernorm(x, axis=-1, eps=1e-5):
    m = x.mean(dim=axis, keepdim=True)
    v = x.var(dim=axis, keepdim=True, unbiased=False)
    return (x - m) / torch.sqrt(v + eps)
def _scatter_add(tgt, idx, src, axis=0):
    return tgt.clone().index_add_(axis, idx, src)
def _segment_sum(src, seg, n):
    out = torch.zeros((n,) + src.shape[1:], dtype=src.dtype)
    return out.index_add_(0, seg, src)
def _pad(x, pw):
    flat = tuple(v for pair in reversed(pw) for v in pair)
    return torch.nn.functional.pad(x, flat)

kernel_name = 'standalone__low_rank_proj_linformer__sampling'

def setup_inputs():

    _w = (lambda a: (lambda t: t.to(torch.bfloat16) if t.is_floating_point() else t)(torch.as_tensor(a)))
    B, H, Sq, Skv, Dh, R = 16, 32, 8, 2048, 128, 16
    return {
        "q": _w((lambda *s: torch.randn(*s, dtype=torch.bfloat16) * 0.8)(B, H, Sq, Dh)),
        "k": _w((lambda *s: torch.randn(*s, dtype=torch.bfloat16) * 0.8)(B, H, Skv, Dh)),
        "v": _w((lambda *s: torch.randn(*s, dtype=torch.bfloat16) * 0.05)(B, H, Skv, Dh)),
        "e_proj": _w((lambda *s: torch.randn(*s, dtype=torch.bfloat16) * 0.8)(R, Skv) * (Skv ** -0.5)),
        "f_proj": _w((lambda *s: torch.randn(*s, dtype=torch.bfloat16) * 0.05)(R, Skv) * (Skv ** -0.5)),
    }

def reference(q, k, v, e_proj, f_proj):
    B, H, Sq, Dh = q.shape
    kp = torch.einsum("rn,bhnd->bhrd", e_proj, k)
    vp = torch.einsum("rn,bhnd->bhrd", f_proj, v)
    scores = torch.einsum("bhqd,bhrd->bhqr", q, kp) * (Dh ** -0.5)
    p = _softmax(scores, axis=-1)
    o = torch.einsum("bhqr,bhrd->bhqd", p, vp)
    return o
```

```python
import sys
NAME = "standalone__low_rank_proj_linformer__sampling"
HEADER = """; Kernarg layout for this problem (64 bytes, ptrs only, base s[0:1]):
"""
def gen(N=5, pol="nt", epol="", opol="", lane="lin", stamps=0, mask=0, endat=0, endmask=255, xmask="", P=0, tl=0, flags=1, pre=1, cpre=1, alt=0, startat=0):
    var = bool(mask or endat or xmask or startat)
    PL = P or (N + 1 if var else N)
    assert PL <= 6
    KPB = 131072 if flags else 65536
    FLG = KPB + 4 * 4352
    LDS = FLG + 64
    o = []; A = o.append
    A(HEADER + f"; @launch grid=(256,1,1) block=(512,1,1) lds={LDS}")
    A('.amdgcn_target "amdgcn-amd-amdhsa--gfx950"\n.text')
    A(f".globl {NAME}_kernel\n.p2align 8\n.type {NAME}_kernel,@function\n{NAME}_kernel:")
    if stamps:
        A("    s_memrealtime s[52:53]")
        A("    s_load_dwordx2 s[56:57], s[0:1], 56")
    A("    s_load_dwordx8 s[4:11], s[0:1], 0        ; q k v e")
    A("    s_load_dwordx4 s[12:15], s[0:1], 32      ; f out")
    A("    v_lshrrev_b32 v3, 6, v0")
    A("    v_and_b32 v4, 15, v0                     ; c")
    A("    v_readfirstlane_b32 s3, v3")
    A("    v_bfe_u32 v5, v0, 4, 2                   ; g")
    A("    s_cmp_ge_u32 s2, 256")
    A("    s_cbranch_scc1 L_end")
    A("    s_cmp_ge_u32 s3, 4")
    A("    s_cbranch_scc0 L_stream")
    A("    v_and_b32 v6, 63, v0")
    if cpre:
        A("    s_getpc_b64 s[28:29]")
        A("L_pc:")
        A("    v_min_u32 v7, (L_end - L_pc) / 64, v6")
        A("    v_lshlrev_b32 v7, 6, v7")
        A("    global_load_dword v70, v7, s[28:29]")
    if flags:
        A(f"    v_mov_b32 v66, {FLG}")
        A("    v_lshl_add_u32 v7, v5, 2, v66")
        A("    v_mov_b32 v67, 0")
        A("    ds_write_b32 v7, v67")
        A("    s_waitcnt lgkmcnt(0)")
        A("    s_barrier")
    A("    s_branch L_helper")
    A("L_stream:")
    ACC, BR, DR, ER, AR = 8, 40, 72, 104, 108
    A("    v_lshlrev_b32 v1, 4, v4")
    if lane == "lin":
        A("    v_lshl_add_u32 v1, v5, 8, v1")
        joff = lambda j: j * 1024
    else:
        A("    v_lshl_add_u32 v1, v5, 11, v1")
        joff = lambda j: j * 256
    A("    v_lshl_add_u32 v1, v3, 13, v1")
    A("    v_add_u32 v2, 4096, v1")
    A("    v_lshlrev_b32 v6, 12, v4")
    A("    v_lshl_add_u32 v6, v5, 4, v6")
    A("    v_lshl_add_u32 v6, v3, 6, v6")
    A("    s_lshl_b32 s40, s2, 20")
    A("    s_mov_b32 s18, 0x100000")
    A("    s_mov_b32 s19, 0x20000")
    A("    s_mov_b32 s26, 0x10000")
    A("    s_mov_b32 s27, 0x20000")
    A("    s_mov_b32 s43, 0")
    A("    s_mov_b32 s44, 0")
    A("    s_waitcnt lgkmcnt(0)")
    A("    s_add_u32 s16, s6, s40")
    A("    s_addc_u32 s17, s7, 0")
    A("    s_mov_b32 s24, s10")
    A("    s_mov_b32 s25, s11")
    def dload(j):
        off = joff(j); r = DR + 4 * j
        A(f"    buffer_load_dwordx4 v[{r}:{r+3}], v{1 + off//4096}, s[16:19], s43 offen offset:{off%4096} {pol}".rstrip())
        if j == 0:
            A(f"    buffer_load_dwordx4 v[{ER}:{ER+3}], v6, s[24:27], s44 offen {epol}".rstrip())
    def wait(j):
        c = lambda n: n if 1 <= j <= n else n - 1
        if var:
            A(f"    s_waitcnt vmcnt({c(N+1)})")
            A(f"    s_bitcmp1_b32 s50, {j}")
            A(f"    s_cbranch_scc1 L_go{j}")
            A(f"    s_waitcnt vmcnt({c(N)})")
            A(f"L_go{j}:")
        else:
            A(f"    s_waitcnt vmcnt({c(N)})")
    def pair(i):
        for dd in range(8):
            sel = "s47" if dd & 1 else "s46"
            A(f"    v_perm_b32 v{BR+4*dd+i}, v{DR+8*i+4+(dd>>1)}, v{DR+8*i+(dd>>1)}, {sel}")
    for j in range(PL):
        dload(j)
    A("    s_mov_b32 s20, s16                       ; K base")
    A("    s_mov_b32 s21, s17")
    A("    s_add_u32 s22, s8, s40                   ; V base")
    A("    s_addc_u32 s23, s9, 0")
    A("    s_mov_b32 s46, 0x05040100")
    A("    s_mov_b32 s47, 0x07060302")
    A("    s_mov_b32 s48, 0")
    if var:
        A(f"    s_mov_b32 s50, {mask}")
        A(f"    s_mov_b32 s49, s50")
        if xmask:
            tbl = [int(x, 16) for x in xmask.split(".")]
            lo = sum(tbl[i] << (8 * i) for i in range(4)); hi = sum(tbl[4 + i] << (8 * i) for i in range(4))
            A("    s_getreg_b32 s51, hwreg(HW_REG_XCC_ID, 0, 3)")
            A(f"    s_mov_b32 s60, {lo:#x}\n    s_mov_b32 s61, {hi:#x}")
            A("    s_lshl_b32 s51, s51, 3\n    s_lshr_b64 s[60:61], s[60:61], s51\n    s_and_b32 s50, s60, 255")
        if startat:
            A("    s_mov_b32 s49, s50\n    s_mov_b32 s50, 255")
    A("    v_lshrrev_b32 v7, 2, v4                  ; c>>2")
    A("    v_and_b32 v112, 1, v7")
    A("    v_lshlrev_b32 v112, 6, v112")
    A("    v_lshl_add_u32 v112, v7, 9, v112")
    A("    v_and_b32 v7, 3, v4")
    A("    v_lshl_add_u32 v112, v7, 4, v112")
    A("    v_lshl_add_u32 v112, v5, 11, v112")
    A("    v_lshl_add_u32 v112, v3, 13, v112")
    A("    v_xor_b32 v113, 64, v112")
    for i in range(32):
        A(f"    v_mov_b32 v{ACC+i}, 0")
    if flags:
        A(f"    v_mov_b32 v4, {FLG}")
        A("    v_mov_b32 v5, 1")
        A("    s_barrier")
    if tl:
        A("    v_mov_b32 v114, 0\n    v_mov_b32 v115, s52\n    s_memrealtime s[60:61]\n    s_waitcnt lgkmcnt(0)\n    v_writelane_b32 v115, s60, 1")
    A("    s_branch L_entry")
    A(".p2align 6")
    A("L_loop:")
    for j in range(8):
        if j == PL: A("L_entry:")
        wait(j)
        dload(j)
        idx = (j - PL) % 8
        if idx & 1:
            pair(idx >> 1)
            if idx == 7:
                A("    s_cmp_eq_u32 s48, 64")
                for dd in range(8):
                    a = ACC + 4 * dd; b = BR + 4 * dd
                    A(f"    v_mfma_f32_16x16x32_bf16 v[{a}:{a+3}], v[{AR}:{AR+3}], v[{b}:{b+3}], v[{a}:{a+3}]")
                A("    s_cbranch_scc1 L_bound")
        if j == 7:
            if lane == "lin":
                A(f"    v_perm_b32 v{AR}, v{ER+2}, v{ER}, s46")
                A(f"    v_perm_b32 v{AR+1}, v{ER+2}, v{ER}, s47")
                A(f"    v_perm_b32 v{AR+2}, v{ER+3}, v{ER+1}, s46")
                A(f"    v_perm_b32 v{AR+3}, v{ER+3}, v{ER+1}, s47")
                A("    s_add_u32 s43, s43, 0x8000")
                A(f"    v_permlane32_swap_b32 v{AR}, v{AR+2}")
                A(f"    v_permlane32_swap_b32 v{AR+1}, v{AR+3}")
                A("    s_add_u32 s44, s44, 0x100")
                A("    s_add_u32 s48, s48, 1")
                A(f"    v_permlane16_swap_b32 v{AR}, v{AR+1}")
                A(f"    v_permlane16_swap_b32 v{AR+2}, v{AR+3}")
            else:
                for i in range(4): A(f"    v_mov_b32 v{AR+i}, v{ER+i}")
                A("    s_add_u32 s43, s43, 0x8000")
                A("    s_add_u32 s44, s44, 0x100")
                A("    s_add_u32 s48, s48, 1")
    if tl:
        A("    s_memrealtime s[60:61]\n    s_sub_u32 m0, s48, 1\n    s_waitcnt lgkmcnt(0)\n    v_writelane_b32 v114, s60, m0")
    if alt:
        A("    v_xor_b32 v1, 0x2000, v1\n    v_xor_b32 v2, 0x2000, v2\n    v_xor_b32 v6, 64, v6")
    if startat:
        A(f"    s_cmp_eq_u32 s48, {startat}")
        A(f"    s_cselect_b32 s50, s49, s50")
    if endat:
        A(f"    s_cmp_ge_u32 s48, {64-endat}")
        A(f"    s_cselect_b32 s50, {endmask}, s50")
    A("    s_and_b32 s45, s48, 14")
    A("    s_cbranch_scc1 L_loop")
    A("    s_bitcmp1_b32 s48, 0")
    A("    s_cbranch_scc1 L_chkb")
    A("    s_bitcmp1_b32 s48, 4")
    A("    s_cselect_b32 s16, s22, s20")
    A("    s_cselect_b32 s17, s23, s21")
    A("    s_cselect_b32 s24, s12, s10")
    A("    s_cselect_b32 s25, s13, s11")
    A("    s_lshl_b32 s43, s48, 14")
    A("    s_and_b32 s43, s43, 0x80000")
    A("    s_mov_b32 s44, 0")
    A("    s_cmp_eq_u32 s48, 64")
    A("    s_cselect_b32 s18, 0, s18")
    A("    s_cselect_b32 s26, 0, s26")
    A("    s_branch L_loop")
    A("L_chkb:")
    A("    s_cmp_eq_u32 s48, 1")
    A("    s_cbranch_scc1 L_loop")
    A("L_bound:")
    A("    s_memrealtime s[62:63]" if tl else "    s_nop 0")
    for dd in range(8):
        a = ACC + 4 * dd
        if dd == 7: pass
        A(f"    ds_write_b128 v{112 + (dd & 1)}, v[{a}:{a+3}] offset:{(dd>>1)*128}")
    A("    s_cmp_eq_u32 s48, 64")
    if flags:
        A("    s_cbranch_scc1 L_last")
        A("    ds_add_u32 v4, v5")
        A("    v_add_u32 v4, 4, v4")
        A("    v_add_u32 v112, 0x8000, v112")
        A("    v_add_u32 v113, 0x8000, v113")
        A("    s_waitcnt lgkmcnt(0)")
    else:
        A("    s_waitcnt lgkmcnt(0)")
        A("    s_barrier")
        A("    s_cbranch_scc1 L_exit")
        A("    v_xor_b32 v112, 0x8000, v112")
        A("    v_xor_b32 v113, 0x8000, v113")
    for i in range(32):
        A(f"    v_mov_b32 v{ACC+i}, 0")
    A("    s_branch L_loop")
    if flags:
        A("L_last:")
        A("    s_waitcnt lgkmcnt(0)")
        A("    s_barrier")
        A("    s_branch L_exit")
    A("L_helper:")
    QR, RD = 40, 8
    if pre:
        A("    s_waitcnt lgkmcnt(0)")
        A("    s_lshr_b32 s28, s2, 3")
        A("    s_lshl_b32 s28, s28, 11")
        A("    v_and_b32 v6, 127, v0")
        A("    v_lshl_add_u32 v6, v6, 4, s28")
        A("    s_bitcmp1_b32 s3, 1")
        A("    s_cselect_b32 s28, s12, s10")
        A("    s_cselect_b32 s29, s13, s11")
        A("    global_load_dwordx4 v[72:75], v6, s[28:29]")
    A("    s_sub_u32 s28, s3, 4")
    A("    s_lshl_b32 s41, s2, 12")
    A("    s_mov_b32 s34, 4096")
    A("    s_mov_b32 s35, 0x20000")
    A("    s_mov_b32 s38, 2048")
    A("    s_mov_b32 s39, 0x20000")
    A("    v_lshlrev_b32 v6, 8, v4")
    A("    v_lshl_add_u32 v6, v5, 4, v6             ; q*256 + g*16")
    A("    v_and_b32 v7, 3, v4")
    A("    v_lshlrev_b32 v1, 6, v7")
    A("    v_lshrrev_b32 v2, 2, v4")
    A("    v_lshl_add_u32 v1, v2, 4, v1")
    A("    v_lshl_add_u32 v1, v5, 11, v1")
    A("    v_lshlrev_b32 v7, 1, v7")
    A("    v_lshl_add_u32 v7, v2, 4, v7")
    A("    v_mul_u32_u24 v2, 1088, v5")
    A("    v_add_u32 v7, v7, v2")
    A(f"    s_mul_i32 s29, s28, 4352")
    A(f"    s_add_u32 s29, s29, {KPB}")
    A("    v_add_u32 v7, s29, v7")
    A("    v_mul_u32_u24 v2, 272, v4")
    A("    v_lshl_add_u32 v2, v5, 4, v2")
    A("    v_add_u32 v2, s29, v2")
    A("    v_xor_b32 v3, 64, v1")
    A("    s_and_b32 s30, s28, 1")
    A("    s_lshl_b32 s30, s30, 6")
    A("    s_lshl_b32 s31, s28, 9")
    A("    s_add_u32 s31, s31, 0x8000")
    A("    v_xor_b32 v60, s30, v1")
    A("    v_add_u32 v60, s31, v60")
    A("    s_lshl_b32 s31, s28, 6")
    A("    v_add_u32 v61, s31, v6")
    A("    s_mov_b32 s49, 0x3db504f3                ; 128^-0.5")
    A("    s_mov_b32 s50, 0x3fb8aa3b                ; log2(e)")
    A("    s_mov_b32 s48, 0")
    A("    s_waitcnt lgkmcnt(0)")
    A("    s_add_u32 s32, s4, s41")
    A("    s_addc_u32 s33, s5, 0")
    A("    s_add_u32 s36, s14, s41")
    A("    s_addc_u32 s37, s15, 0")
    A("L_hloop:")
    for m in range(4):
        A(f"    buffer_load_dwordx4 v[{QR+4*m}:{QR+4*m+3}], v6, s[32:35], s48 offen offset:{m*64}")
    def sync(which):
        if not flags:
            A("    s_barrier"); return
        if which:
            A("    s_cmp_lg_u32 s48, 0")
            A("    s_cbranch_scc1 L_fin")
        A(f"L_poll{which}:")
        A("    s_sleep 8")
        A("    ds_read_b32 v67, v66")
        A("    s_waitcnt lgkmcnt(0)")
        A("    v_readfirstlane_b32 s51, v67")
        A("    s_cmp_lt_u32 s51, 256")
        A(f"    s_cbranch_scc1 L_poll{which}")
        A("    v_add_u32 v66, 4, v66")
        if which:
            A("    s_branch L_v")
            A("L_fin:")
            A("    s_barrier")
            A("L_v:")
    sync(0)
    def addq(x, y):
        for i in (0, 2):
            A(f"    v_pk_add_f32 v[{x+i}:{x+i+1}], v[{x+i}:{x+i+1}], v[{y+i}:{y+i+1}]")
    def reduce2(vaddr, base):
        for t in range(2):
            for src in range(4):
                a = RD + (t * 4 + src) * 4
                A(f"    ds_read_b128 v[{a}:{a+3}], v{vaddr} offset:{base + src*8192 + t*256}")
        for t in range(2):
            a = RD + t * 16
            A(f"    s_waitcnt lgkmcnt({6 - 4*t})")
            addq(a, a + 4)
            A(f"    s_waitcnt lgkmcnt({4 - 4*t})")
            addq(a + 8, a + 12)
            addq(a, a + 8)
            A(f"    v_cvt_pk_bf16_f32 v{56+2*t}, v{a}, v{a+1}")
            A(f"    v_cvt_pk_bf16_f32 v{57+2*t}, v{a+2}, v{a+3}")
    A("    s_mov_b32 s51, 0")
    A("    v_mov_b32 v62, v1")
    A("    v_mov_b32 v63, v7")
    A("L_kq:")
    reduce2(62, 0)
    for t in range(2):
        A(f"    ds_write_b16 v63, v{56+2*t} offset:{t*8}")
        A(f"    ds_write_b16_d16_hi v63, v{56+2*t} offset:{t*8 + 272}")
        A(f"    ds_write_b16 v63, v{57+2*t} offset:{t*8 + 544}")
        A(f"    ds_write_b16_d16_hi v63, v{57+2*t} offset:{t*8 + 816}")
    A("    s_waitcnt lgkmcnt(0)")
    A("    v_xor_b32 v62, 64, v62")
    A("    v_add_u32 v62, 512, v62")
    A("    v_add_u32 v63, 64, v63")
    A("    s_add_u32 s51, s51, 1")
    A("    s_cmp_lt_u32 s51, 4")
    A("    s_cbranch_scc1 L_kq")
    for m in range(4):
        A(f"    ds_read_b128 v[{RD+m*4}:{RD+m*4+3}], v2 offset:{m*64}")
    A("    s_waitcnt vmcnt(0)")
    for m in range(4):
        A(f"    s_waitcnt lgkmcnt({3-m})")
        c = "0" if m == 0 else "v[28:31]"
        A(f"    v_mfma_f32_16x16x32_bf16 v[28:31], v[{RD+m*4}:{RD+m*4+3}], v[{QR+m*4}:{QR+m*4+3}], {c}")
    A("    s_nop 7")
    def rnd():
        A("    v_cvt_pk_bf16_f32 v24, v28, v29")
        A("    v_cvt_pk_bf16_f32 v25, v30, v31")
        A("    v_lshlrev_b32 v28, 16, v24")
        A("    v_and_b32 v29, 0xffff0000, v24")
        A("    v_lshlrev_b32 v30, 16, v25")
        A("    v_and_b32 v31, 0xffff0000, v25")
    rnd()
    for i in range(4): A(f"    v_mul_f32 v{28+i}, s49, v{28+i}")
    rnd()
    def xreduce(op):
        for sw in ("16", "32"):
            A("    v_mov_b32 v25, v24")
            A("    s_nop 1")
            A(f"    v_permlane{sw}_swap_b32 v24, v25")
            A("    s_nop 1")
            A(f"    {op} v24, v24, v25")
    A("    v_max3_f32 v24, v28, v29, v30")
    A("    v_max_f32 v24, v24, v31")
    xreduce("v_max_f32")
    for i in range(4): A(f"    v_sub_f32 v{28+i}, v{28+i}, v24")
    for i in range(4): A(f"    v_mul_f32 v{28+i}, s50, v{28+i}")
    for i in range(4): A(f"    v_exp_f32 v{28+i}, v{28+i}")
    A("    s_nop 0")
    A("    v_add_f32 v24, v28, v29")
    A("    v_add_f32 v25, v30, v31")
    A("    v_add_f32 v24, v24, v25")
    xreduce("v_add_f32")
    A("    v_rcp_f32 v24, v24")
    A("    s_nop 0")
    for i in range(4): A(f"    v_mul_f32 v{28+i}, v24, v{28+i}")
    A("    v_cvt_pk_bf16_f32 v64, v28, v29")
    A("    v_cvt_pk_bf16_f32 v65, v30, v31")
    sync(1)
    reduce2(60, 0)
    A("    v_mfma_f32_16x16x16_bf16 v[8:11], v[56:57], v[64:65], 0")
    A("    s_nop 0")
    A("    v_mfma_f32_16x16x16_bf16 v[12:15], v[58:59], v[64:65], 0")
    A("    s_nop 5")
    A("    v_cvt_pk_bf16_f32 v16, v8, v9")
    A("    v_cvt_pk_bf16_f32 v17, v10, v11")
    A("    v_cvt_pk_bf16_f32 v18, v12, v13")
    A("    v_cvt_pk_bf16_f32 v19, v14, v15")
    A(f"    buffer_store_dwordx4 v[16:19], v61, s[36:39], 0 offen {opol}".rstrip())
    if flags:
        A("    v_add_u32 v1, 0x10000, v1")
        A("    v_add_u32 v60, 0x10000, v60")
    A("    s_add_u32 s36, s36, 2048")
    A("    s_addc_u32 s37, s37, 0")
    A("    s_add_u32 s48, s48, 2048")
    A("    s_cmp_lt_u32 s48, 4096")
    A("    s_cbranch_scc1 L_hloop")
    A("L_exit:")
    if stamps:
        A("    s_waitcnt vmcnt(0)")
        A("    s_memrealtime s[54:55]")
        A("    s_lshl_b32 s58, s2, 3\n    s_add_u32 s58, s58, s3\n    s_lshl_b32 s58, s58, 4\n    v_mov_b32 v1, s58")
        A("    s_waitcnt lgkmcnt(0)")
        A("    s_getreg_b32 s59, hwreg(HW_REG_XCC_ID, 0, 4)")
        A("    s_lshl_b32 s59, s59, 28\n    s_or_b32 s55, s55, s59")
        for i in range(4): A(f"    v_mov_b32 v{8+i}, s{52+i}")
        if tl:
            A("    v_writelane_b32 v115, s62, 2\n    v_writelane_b32 v115, s54, 3")
            A("    v_and_b32 v62, 63, v0\n    v_lshlrev_b32 v62, 2, v62")
            A("    s_lshl_b32 s60, s58, 5\n    s_add_u32 s60, s60, 0x100000\n    v_add_u32 v62, s60, v62")
            A("    global_store_dword v62, v114, s[56:57]")
            A("    global_store_dword v62, v115, s[56:57] offset:256")
        A("    s_mov_b64 exec, 1")
        A("    global_store_dwordx4 v1, v[8:11], s[56:57]")
    A("L_end:")
    A("    s_endpgm")
    A(f""".section .rodata,"a"
.p2align 6
.amdhsa_kernel {NAME}_kernel
  .amdhsa_next_free_vgpr 116
  .amdhsa_next_free_sgpr 64
  .amdhsa_accum_offset 116
  .amdhsa_group_segment_fixed_size 0
  .amdhsa_kernarg_size 64
  .amdhsa_user_sgpr_count 2
  .amdhsa_user_sgpr_kernarg_segment_ptr 1
  .amdhsa_system_sgpr_workgroup_id_x 1
.end_amdhsa_kernel""")
    return "\n".join(o) + "\n"
if __name__ == "__main__":
    outdir = sys.argv[1]
    for spec in sys.argv[2:]:
        name, kv = spec.split(":")
        d = {}
        for x in kv.split(","):
            if not x: continue
            k, v = x.split("=")
            d[k] = int(v) if v.lstrip("-").isdigit() else v.replace("+", " ")
        open(f"{outdir}/{name}.s", "w").write(gen(**d))
```

```python
import sys
from gen2 import HEADER, NAME
def gen(N=20, pol="nt", epol="", opol="", stamps=0, tl=0, mask=0, xmask="", boost=0, pre=1, cpre=1, noe=0, sleep=0, prio=1, startN=0):
    var = bool(mask or xmask)
    ERING = 131072
    XCH = ERING + 16384
    FLG = XCH + 8192
    LDS = FLG + 64
    o = []; A = o.append
    A(HEADER + f"; @launch grid=(256,1,1) block=(320,1,1) lds={LDS}")
    A('.amdgcn_target "amdgcn-amd-amdhsa--gfx950"\n.text')
    A(f".globl {NAME}_kernel\n.p2align 8\n.type {NAME}_kernel,@function\n{NAME}_kernel:")
    if stamps:
        A("    s_memrealtime s[52:53]")
        A("    s_load_dwordx2 s[56:57], s[0:1], 56")
    A("    s_load_dwordx8 s[4:11], s[0:1], 0        ; q k v e")
    A("    s_load_dwordx4 s[12:15], s[0:1], 32      ; f out")
    A("    v_lshrrev_b32 v3, 6, v0")
    A("    v_and_b32 v4, 15, v0                     ; lane & 15")
    A("    v_readfirstlane_b32 s3, v3")
    A("    v_bfe_u32 v5, v0, 4, 2                   ; g")
    A("    s_cmp_ge_u32 s2, 256")
    A("    s_cbranch_scc1 L_end")
    A(f"    v_mov_b32 v8, {FLG}")
    A("    s_cmp_eq_u32 s3, 0")
    A("    s_cbranch_scc1 L_loader")
    if cpre:
        A("    s_getpc_b64 s[28:29]")
        A("L_pc:")
        A("    v_and_b32 v6, 63, v0")
        A("    v_min_u32 v7, (L_end - L_pc) / 64, v6")
        A("    v_lshlrev_b32 v7, 6, v7")
        A("    global_load_dword v40, v7, s[28:29]")
    A("    v_lshl_add_u32 v7, v4, 2, v8")
    A("    v_mov_b32 v9, 0")
    A("    ds_write_b32 v7, v9")
    A("    s_waitcnt lgkmcnt(0)")
    A("    s_barrier")
    A("    s_branch L_cons")
    A("L_loader:")
    A("    v_lshlrev_b32 v1, 2, v5")
    A("    v_xor_b32 v1, v1, v4")
    A("    v_lshlrev_b32 v1, 4, v1")
    A("    v_lshl_add_u32 v1, v5, 8, v1")
    A("    v_add_u32 v2, 4096, v1")
    A("    v_lshlrev_b32 v6, 12, v4")
    A("    v_lshl_add_u32 v6, v5, 4, v6")
    A("    s_lshl_b32 s40, s2, 20")
    A("    s_mov_b32 s18, 0x100000")
    A("    s_mov_b32 s19, 0x20000")
    A("    s_mov_b32 s26, 0x10000")
    A("    s_mov_b32 s27, 0x20000")
    A("    s_mov_b32 s43, 0")
    A("    s_mov_b32 s44, 0")
    A("    s_mov_b32 s45, 0")
    A("    s_mov_b32 s48, 0                         ; chunk")
    A("    s_mov_b64 vcc, -1")
    if prio: A("    s_setprio 3")
    if var:
        A(f"    s_mov_b32 s50, {mask}")
        if xmask:
            tbl = [int(x, 16) for x in xmask.split(".")]
            lo = sum(tbl[i] << (8 * i) for i in range(4)); hi = sum(tbl[4 + i] << (8 * i) for i in range(4))
            A("    s_getreg_b32 s51, hwreg(HW_REG_XCC_ID, 0, 3)")
            A(f"    s_mov_b32 s60, {lo:#x}\n    s_mov_b32 s61, {hi:#x}")
            A("    s_lshl_b32 s51, s51, 3\n    s_lshr_b64 s[60:61], s[60:61], s51\n    s_and_b32 s50, s60, 255")
    PN = N + 1 if var else N
    lagc = (PN + 7) // 8 if (PN - 1) % 8 != 7 else PN // 8
    jp = (PN - 1) % 8
    assert 8 * 100 + jp - PN == 8 * (100 - lagc) + 7, (PN, jp, lagc)
    A(f"    v_mov_b32 v9, {1 - lagc}")
    if tl: A("    v_mov_b32 v14, 0\n    v_mov_b32 v15, s52")
    A("    s_waitcnt lgkmcnt(0)")
    A("    s_add_u32 s16, s6, s40")
    A("    s_addc_u32 s17, s7, 0")
    A("    s_mov_b32 s24, s10")
    A("    s_mov_b32 s25, s11")
    def cnt(j, n):
        p = 800 + j - n
        return n - 1 + (0 if noe else sum(1 for c in range(90, 101) if p <= 8 * c < 800 + j))
    A("L_loop:")
    A("    s_mov_b32 m0, s45")
    for j in range(8):
        if j == 4: A("    s_add_u32 m0, s45, 4096")
        if boost or j == jp: A(f"    s_cbranch_vccnz L_go{j}")
        if var:
            A(f"    s_waitcnt vmcnt({cnt(j, N+1)})")
            if j == jp: A("    ds_write_b32 v8, v9")
            A(f"    s_bitcmp1_b32 s50, {j}")
            A(f"    s_cbranch_scc1 L_go{j}")
            A(f"    s_waitcnt vmcnt({cnt(j, N)})")
        else:
            A(f"    s_waitcnt vmcnt({cnt(j, N)})")
            if j == jp: A("    ds_write_b32 v8, v9")
        A(f"L_go{j}:")
        A(f"    buffer_load_dwordx4 v{1 + j//4}, s[16:19], s43 offen offset:{(j%4)*1024} {pol} lds")
        if j == 0 and not noe:
            A("    s_lshr_b32 s46, s45, 3")
            A(f"    s_add_u32 m0, s46, {ERING}")
            A("    s_nop 0")
            A(f"    buffer_load_dwordx4 v6, s[24:27], s44 offen {epol} lds")
            A("    s_mov_b32 m0, s45")
        if j == 5:
            A("    ds_read_b128 v[10:13], v8 offset:16")
    A("    v_add_u32 v9, 1, v9")
    A("    s_add_u32 s43, s43, 0x2000")
    A("    s_add_u32 s44, s44, 64")
    A("    s_add_u32 s45, s45, 0x2000")
    A("    s_and_b32 s45, s45, 0x1ffff")
    A("    s_add_u32 s48, s48, 1")
    if tl:
        A("    s_memrealtime s[60:61]\n    s_sub_u32 s62, s48, 1\n    s_lshr_b32 m0, s62, 2\n    s_waitcnt lgkmcnt(0)\n    v_writelane_b32 v14, s60, m0")
    A("    s_and_b32 s46, s48, 1")
    A("    s_cbranch_scc1 L_loop")
    A("    s_cmp_eq_u32 s48, 2")
    A("    s_cbranch_scc1 L_first")
    A("L_chk:")
    A("    s_waitcnt lgkmcnt(0)")
    A("    v_min3_u32 v10, v10, v11, v12")
    A("    v_min_u32 v10, v10, v13")
    A("    v_add_u32 v10, 14, v10")
    A("    s_nop 0")
    A("    v_readfirstlane_b32 s46, v10")
    A("    s_cmp_lt_u32 s46, s48")
    A("    s_cbranch_scc1 L_spin")
    if boost:
        A(f"    s_cmp_ge_u32 s48, {256 - boost}")
        A("    s_cselect_b64 vcc, -1, 0")
    A("    s_and_b32 s46, s48, 63")
    A("    s_cbranch_scc1 L_loop")
    A("    s_cmp_eq_u32 s48, 256")
    A("    s_cbranch_scc1 L_drain")
    A("    s_bitcmp1_b32 s48, 6")
    A("    s_cselect_b32 s16, s8, s6")
    A("    s_cselect_b32 s17, s9, s7")
    A("    s_cselect_b32 s24, s12, s10")
    A("    s_cselect_b32 s25, s13, s11")
    A("    s_add_u32 s16, s16, s40")
    A("    s_addc_u32 s17, s17, 0")
    A("    s_lshl_b32 s43, s48, 12")
    A("    s_and_b32 s43, s43, 0x80000")
    A("    s_mov_b32 s44, 0")
    A("    s_branch L_loop")
    A("L_spin:")
    A("    ds_read_b128 v[10:13], v8 offset:16")
    A("    s_branch L_chk")
    A("L_first:")
    A("    s_barrier")
    A("    s_mov_b64 vcc, 0")
    A("    s_branch L_loop")
    A("L_drain:")
    per = 8 if noe else 9
    nd = lagc + boost
    assert (nd - 1) * per <= 63
    for k in range(nd - 1, -1, -1):
        A(f"    v_mov_b32 v9, {256 - k}")
        A(f"    s_waitcnt vmcnt({k * per})")
        A("    ds_write_b32 v8, v9")
    if tl: A("    s_memrealtime s[62:63]")
    A("    s_branch L_exit")
    A("L_cons:")
    A("    s_sub_u32 s28, s3, 1")
    if pre:
        A("    s_lshr_b32 s30, s2, 3")
        A("    s_lshl_b32 s30, s30, 11")
        A("    v_and_b32 v6, 127, v0")
        A("    v_lshl_add_u32 v6, v6, 4, s30")
        A("    s_bitcmp1_b32 s28, 1")
        A("    s_cselect_b32 s30, s12, s10")
        A("    s_cselect_b32 s31, s13, s11")
        A("    global_load_dwordx4 v[44:47], v6, s[30:31]")
    A("    s_lshl_b32 s41, s2, 12")
    A("    s_add_u32 s32, s4, s41")
    A("    s_addc_u32 s33, s5, 0")
    A("    s_mov_b32 s34, 4096")
    A("    s_mov_b32 s35, 0x20000")
    A("    s_add_u32 s36, s14, s41")
    A("    s_addc_u32 s37, s15, 0")
    A("    s_mov_b32 s38, 2048")
    A("    s_mov_b32 s39, 0x20000")
    A("    s_lshl_b32 s29, s28, 6")
    A("    v_lshlrev_b32 v6, 8, v4")
    A("    v_lshl_add_u32 v6, v5, 4, v6")
    A("    v_add_u32 v6, s29, v6")
    A("    v_lshrrev_b32 v7, 2, v4")
    A("    v_xor_b32 v1, s28, v7")
    A("    v_lshlrev_b32 v1, 6, v1")
    A("    v_lshl_add_u32 v1, v7, 8, v1")
    A("    v_and_b32 v7, 3, v4")
    A("    v_lshl_add_u32 v1, v7, 4, v1")
    A("    v_lshl_add_u32 v1, v5, 11, v1")
    A("    v_and_b32 v2, 63, v0")
    A("    v_lshlrev_b32 v2, 4, v2")
    A(f"    v_add_u32 v3, {XCH}, v2")
    A(f"    v_add_u32 v2, {ERING}, v2")
    A("    s_lshl_b32 s29, s28, 2")
    A("    v_add_u32 v7, s29, v8")
    A("    v_mov_b32 v4, v8")
    A("    v_mov_b32 v5, 1")
    A("    s_lshl_b32 s30, s28, 10")
    A("    s_mov_b32 s49, 0x3db504f3                ; 128^-0.5")
    A("    s_mov_b32 s50, 0x3fb8aa3b                ; log2(e)")
    A("    s_mov_b32 s48, 0                         ; chunk")
    A("    s_mov_b32 s47, 0")
    A("    s_mov_b32 s42, 0")
    def phase(tag):
        for i in range(8): A(f"    v_mov_b32 v{12+i}, 0")
        A(f"L_c{tag}:")
        A("    s_and_b32 s45, s48, 15")
        A("    s_lshl_b32 s46, s45, 13")
        A("    s_lshl_b32 s45, s45, 10")
        A("    v_add_u32 v10, s46, v1")
        A("    v_add_u32 v11, s45, v2")
        A("    s_add_u32 s48, s48, 1")
        A("    v_mov_b32 v32, s48")
        A("    s_cmp_le_i32 s48, s47")
        A(f"    s_cbranch_scc1 L_r{tag}")
        A(f"L_p{tag}:")
        if sleep: A(f"    s_sleep {sleep}")
        A("    ds_read_b32 v9, v8")
        A("    s_waitcnt lgkmcnt(0)")
        A("    v_readfirstlane_b32 s47, v9")
        A("    s_cmp_gt_i32 s48, s47")
        A(f"    s_cbranch_scc1 L_p{tag}")
        A(f"L_r{tag}:")
        A("    ds_read_b128 v[20:23], v11")
        for t in range(2):
            for h in range(2):
                r = 24 + 4 * t + 2 * h
                A(f"    ds_read_b64_tr_b16 v[{r}:{r+1}], v10 offset:{h*1024 + t*8}")
        A("    ds_write_b32 v7, v32 offset:16")
        A("    s_and_b32 s45, s48, 63")
        for t in range(2):
            A(f"    s_waitcnt lgkmcnt({3 - 2*t})")
            a, b = f"v[20:23]", f"v[{24+4*t}:{27+4*t}]"
            if tag == "k": a, b = b, a
            A(f"    v_mfma_f32_16x16x32_bf16 v[{12+4*t}:{15+4*t}], {a}, {b}, v[{12+4*t}:{15+4*t}]")
        A(f"    s_cbranch_scc1 L_c{tag}")
    A("L_bh:")
    A("    buffer_load_dwordx4 v[36:39], v6, s[32:35], s42 offen")
    phase("k")
    A("    s_nop 5")
    for i in range(4): A(f"    v_cvt_pk_bf16_f32 v{20+i}, v{12+2*i}, v{13+2*i}")
    A("    s_waitcnt vmcnt(0)")
    A("    v_add_u32 v10, s30, v3")
    A("    v_mfma_f32_16x16x32_bf16 v[28:31], v[20:23], v[36:39], 0")
    A("    s_nop 7")
    A("    ds_write_b128 v10, v[28:31]")
    A("    ds_add_u32 v4, v5 offset:4")
    A("L_ps:")
    A("    ds_read_b32 v9, v4 offset:4")
    A("    s_waitcnt lgkmcnt(0)")
    A("    v_readfirstlane_b32 s45, v9")
    A("    s_cmp_lt_u32 s45, 256")
    A("    s_cbranch_scc1 L_ps")
    for w in range(4): A(f"    ds_read_b128 v[{12+4*w}:{15+4*w}], v3 offset:{w*1024}")
    A("    v_add_u32 v3, 4096, v3")
    A("    v_add_u32 v4, 4, v4")
    A("    s_waitcnt lgkmcnt(0)")
    for i in (0, 2):
        A(f"    v_pk_add_f32 v[{12+i}:{13+i}], v[{12+i}:{13+i}], v[{16+i}:{17+i}]")
        A(f"    v_pk_add_f32 v[{20+i}:{21+i}], v[{20+i}:{21+i}], v[{24+i}:{25+i}]")
    for i in (0, 2):
        A(f"    v_pk_add_f32 v[{28+i}:{29+i}], v[{12+i}:{13+i}], v[{20+i}:{21+i}]")
    def rnd():
        A("    v_cvt_pk_bf16_f32 v24, v28, v29")
        A("    v_cvt_pk_bf16_f32 v25, v30, v31")
        A("    v_lshlrev_b32 v28, 16, v24")
        A("    v_and_b32 v29, 0xffff0000, v24")
        A("    v_lshlrev_b32 v30, 16, v25")
        A("    v_and_b32 v31, 0xffff0000, v25")
    rnd()
    for i in range(4): A(f"    v_mul_f32 v{28+i}, s49, v{28+i}")
    rnd()
    def xreduce(op):
        for sw in ("16", "32"):
            A("    v_mov_b32 v25, v24")
            A("    s_nop 1")
            A(f"    v_permlane{sw}_swap_b32 v24, v25")
            A("    s_nop 1")
            A(f"    {op} v24, v24, v25")
    A("    v_max3_f32 v24, v28, v29, v30")
    A("    v_max_f32 v24, v24, v31")
    xreduce("v_max_f32")
    for i in range(4): A(f"    v_sub_f32 v{28+i}, v{28+i}, v24")
    for i in range(4): A(f"    v_mul_f32 v{28+i}, s50, v{28+i}")
    for i in range(4): A(f"    v_exp_f32 v{28+i}, v{28+i}")
    A("    s_nop 0")
    A("    v_add_f32 v24, v28, v29")
    A("    v_add_f32 v25, v30, v31")
    A("    v_add_f32 v24, v24, v25")
    xreduce("v_add_f32")
    A("    v_rcp_f32 v24, v24")
    A("    s_nop 0")
    for i in range(4): A(f"    v_mul_f32 v{28+i}, v24, v{28+i}")
    A("    v_cvt_pk_bf16_f32 v34, v28, v29")
    A("    v_cvt_pk_bf16_f32 v35, v30, v31")
    phase("v")
    A("    s_nop 5")
    for i in range(4): A(f"    v_cvt_pk_bf16_f32 v{20+i}, v{12+2*i}, v{13+2*i}")
    A("    v_mfma_f32_16x16x16_bf16 v[24:27], v[20:21], v[34:35], 0")
    A("    s_nop 0")
    A("    v_mfma_f32_16x16x16_bf16 v[28:31], v[22:23], v[34:35], 0")
    A("    s_nop 5")
    for i in range(4): A(f"    v_cvt_pk_bf16_f32 v{40+i}, v{24+2*i}, v{25+2*i}")
    A(f"    buffer_store_dwordx4 v[40:43], v6, s[36:39], 0 offen {opol}".rstrip())
    A("    s_add_u32 s36, s36, 2048")
    A("    s_addc_u32 s37, s37, 0")
    A("    s_add_u32 s42, s42, 2048")
    A("    s_cmp_lt_u32 s42, 4096")
    A("    s_cbranch_scc1 L_bh")
    A("L_exit:")
    if stamps:
        A("    s_waitcnt vmcnt(0)")
        A("    s_memrealtime s[54:55]")
        A("    s_mul_i32 s58, s2, 5\n    s_add_u32 s58, s58, s3\n    s_lshl_b32 s58, s58, 4\n    v_mov_b32 v1, s58")
        A("    s_waitcnt lgkmcnt(0)")
        if tl:
            A("    v_writelane_b32 v15, s62, 2\n    v_writelane_b32 v15, s54, 3")
            A("    v_and_b32 v2, 63, v0\n    v_lshlrev_b32 v2, 2, v2")
            A("    s_lshl_b32 s60, s58, 5\n    s_add_u32 s60, s60, 0x100000\n    v_add_u32 v2, s60, v2")
            A("    global_store_dword v2, v14, s[56:57]")
            A("    global_store_dword v2, v15, s[56:57] offset:256")
        A("    s_getreg_b32 s59, hwreg(HW_REG_XCC_ID, 0, 4)")
        A("    s_lshl_b32 s59, s59, 28\n    s_or_b32 s55, s55, s59")
        for i in range(4): A(f"    v_mov_b32 v{8+i}, s{52+i}")
        A("    s_mov_b64 exec, 1")
        A("    global_store_dwordx4 v1, v[8:11], s[56:57]")
    A("L_end:")
    A("    s_endpgm")
    A(f""".section .rodata,"a"
.p2align 6
.amdhsa_kernel {NAME}_kernel
  .amdhsa_next_free_vgpr 48
  .amdhsa_next_free_sgpr 64
  .amdhsa_accum_offset 48
  .amdhsa_group_segment_fixed_size 0
  .amdhsa_kernarg_size 64
  .amdhsa_user_sgpr_count 2
  .amdhsa_user_sgpr_kernarg_segment_ptr 1
  .amdhsa_system_sgpr_workgroup_id_x 1
.end_amdhsa_kernel""")
    return "\n".join(o) + "\n"
if __name__ == "__main__":
    outdir = sys.argv[1]
    for spec in sys.argv[2:]:
        name, kv = spec.split(":")
        d = {}
        for x in kv.split(","):
            if not x: continue
            k, v = x.split("=")
            d[k] = int(v) if v.lstrip("-").isdigit() else v.replace("+", " ")
        open(f"{outdir}/{name}.s", "w").write(gen(**d))
```

```python
import sys
from gen2 import HEADER, NAME
def gen(pol="nt", epol="", opol="", stamps=0, tl=0, pre=1, cpre=1, noe=0, sleep=0, prio=1,
        lv="19.20.21.22", th="-35.35.100", d0=1, P=4, cal="8.64.128.192", DL=16, slope=428, bias=0, ctl=1, csleep=4, spol="sc0 sc1", NS=16, defer=0, last=250):
    CAL = [int(x) for x in str(cal).split(".")]
    assert all(c % P == 0 for c in CAL) and DL % P == 0
    LV = [int(x) for x in str(lv).split(".")]
    TH = [int(x) for x in str(th).replace("m", "-").split(".")]
    assert len(TH) == len(LV) - 1 and all(17 <= n <= 24 for n in LV)
    NW = 6 if ctl else 5
    ERING = 131072
    XCH = ERING + 16384
    FLG = XCH + 8192
    LDS = FLG + 64
    o = []; A = o.append
    A(HEADER + f"; @launch grid=(256,1,1) block=({NW*64},1,1) lds={LDS}")
    A('.amdgcn_target "amdgcn-amd-amdhsa--gfx950"\n.text')
    A(f".globl {NAME}_kernel\n.p2align 8\n.type {NAME}_kernel,@function\n{NAME}_kernel:")
    if stamps:
        A("    s_memrealtime s[52:53]")
    if stamps or ctl:
        A("    s_load_dwordx2 s[56:57], s[0:1], 56")
    A("    s_load_dwordx8 s[4:11], s[0:1], 0        ; q k v e")
    A("    s_load_dwordx4 s[12:15], s[0:1], 32      ; f out")
    A("    v_lshrrev_b32 v3, 6, v0")
    A("    v_and_b32 v4, 15, v0                     ; lane & 15")
    A("    v_readfirstlane_b32 s3, v3")
    A("    v_bfe_u32 v5, v0, 4, 2                   ; g")
    A("    s_cmp_ge_u32 s2, 256")
    A("    s_cbranch_scc1 L_end")
    A(f"    v_mov_b32 v8, {FLG}")
    A("    s_cmp_eq_u32 s3, 0")
    A("    s_cbranch_scc1 L_loader")
    if cpre:
        A("    s_getpc_b64 s[28:29]")
        A("L_pc:")
        A("    v_and_b32 v6, 63, v0")
        A("    v_min_u32 v7, (L_end - L_pc) / 64, v6")
        A("    v_lshlrev_b32 v7, 6, v7")
        A("    global_load_dword v40, v7, s[28:29]")
    A("    v_lshl_add_u32 v7, v4, 2, v8")
    A("    v_mov_b32 v9, 0")
    A("    ds_write_b32 v7, v9")
    A("    s_waitcnt lgkmcnt(0)")
    A("    s_barrier")
    A("    s_branch L_cons")
    A("L_loader:")
    A("    v_lshlrev_b32 v1, 2, v5")
    A("    v_xor_b32 v1, v1, v4")
    A("    v_lshlrev_b32 v1, 4, v1")
    A("    v_lshl_add_u32 v1, v5, 8, v1")
    A("    v_add_u32 v2, 8192 - 1024, v1")
    A("    v_add_u32 v3, 32768 - 2048, v1")
    A("    v_add_u32 v7, 40960 - 3072, v1")
    A("    v_lshlrev_b32 v6, 12, v4")
    A("    v_and_b32 v10, 1, v5")
    A("    v_lshl_add_u32 v6, v10, 6, v6")
    A("    v_lshrrev_b32 v10, 1, v5")
    A("    v_lshl_add_u32 v6, v10, 8, v6")
    A("    s_lshl_b32 s40, s2, 20")
    A("    s_mov_b32 s18, 0x100000")
    A("    s_mov_b32 s19, 0x20000")
    A("    s_mov_b32 s26, 0x10000")
    A("    s_mov_b32 s27, 0x20000")
    A("    s_mov_b32 s43, 0")
    A("    s_mov_b32 s44, 0")
    A("    s_mov_b32 s45, 0")
    A("    s_mov_b32 s48, 0                         ; chunk")
    A("    s_mov_b64 vcc, -1")
    if prio: A("    s_setprio 3")
    lagc = 3
    A(f"    v_mov_b32 v9, {1 - lagc}")
    if tl: A("    v_mov_b32 v14, 0\n    v_mov_b32 v15, s52")
    A("    s_waitcnt lgkmcnt(0)")
    A("    s_add_u32 s16, s6, s40")
    A("    s_addc_u32 s17, s7, 0")
    A("    s_mov_b32 s24, s10")
    A("    s_mov_b32 s25, s11")
    def cnt(j, n):
        p = 800 + j - n
        return n - 1 + (0 if noe else sum(1 for c in range(90, 101) if p <= 8 * c < 800 + j))
    def body(vi, N):
        jp = N - 17
        A(f"L_v{vi}:")
        A("    s_mov_b32 m0, s45")
        for j in range(8):
            if j == 4:
                A("    s_add_u32 m0, s45, 4096")
                A("    s_add_u32 s43, s43, 1024")
            if j == jp and vi == d0: A(f"    s_cbranch_vccnz L_go")
            A(f"    s_waitcnt vmcnt({cnt(j, N)})")
            if j == jp: A("    ds_write_b32 v8, v9")
            if j == jp and vi == d0: A(f"L_go:")
            A(f"    buffer_load_dwordx4 v{(1,2,3,7)[j%4]}, s[16:19], s43 offen offset:{(j%4)*1024} {pol} lds")
            if j == 0 and not noe:
                A("    s_lshr_b32 s46, s45, 3")
                A(f"    s_add_u32 m0, s46, {ERING}")
                A("    s_nop 0")
                A(f"    buffer_load_dwordx4 v6, s[24:27], s44 offen {epol} lds")
                A("    s_mov_b32 m0, s45")
            if j == 5:
                A("    ds_read_b128 v[10:13], v8 offset:16")
                A("    ds_read_b32 v16, v8 offset:12")
        A("    v_add_u32 v9, 1, v9")
        A("    s_or_b32 s43, s43, 0xa3ff")
        A("    s_add_u32 s43, s43, 1")
        A("    s_and_b32 s43, s43, 0xf5800")
        A("    s_bfe_u32 s44, s43, 0xc0007")
        A("    s_add_u32 s45, s45, 0x2000")
        A("    s_and_b32 s45, s45, 0x1ffff")
        A("    s_add_u32 s48, s48, 1")
        if tl:
            A("    s_memrealtime s[60:61]\n    s_sub_u32 s62, s48, 1\n    s_lshr_b32 m0, s62, 2\n    s_waitcnt lgkmcnt(0)\n    v_writelane_b32 v14, s60, m0")
        A("    s_and_b32 s46, s48, 1")
        A(f"    s_cbranch_scc1 L_v{vi}")
    body(d0, LV[d0])
    A("    s_cmp_eq_u32 s48, 2")
    A("    s_cbranch_scc1 L_first")
    A("L_chk:")
    A("    s_waitcnt lgkmcnt(0)")
    A("    v_min3_u32 v10, v10, v11, v12")
    A("    v_min_u32 v10, v10, v13")
    A("    v_add_u32 v10, 14, v10")
    A("    v_readfirstlane_b32 s50, v16")
    A("    v_readfirstlane_b32 s46, v10")
    A("    s_cmp_lt_u32 s46, s48")
    A("    s_cbranch_scc1 L_spin")
    A("    s_and_b32 s46, s48, 127")
    A("    s_cbranch_scc0 L_sw")
    A("L_sel:")
    others = [v for v in range(len(LV)) if v != d0]
    A("    s_cmp_eq_u32 s50, 0")
    A(f"    s_cbranch_scc1 L_v{d0}")
    for v in others[1:]:
        A(f"    s_cmp_eq_u32 s50, {v - d0}")
        A(f"    s_cbranch_scc1 L_v{v}")
    for v in others:
        body(v, LV[v])
        A("    s_branch L_chk")
    A("L_sw:")
    A("    s_cmp_eq_u32 s48, 256")
    A("    s_cbranch_scc1 L_drain")
    A("    s_add_u32 s16, s8, s40")
    A("    s_addc_u32 s17, s9, 0")
    A("    s_mov_b32 s24, s12")
    A("    s_mov_b32 s25, s13")
    A("    s_branch L_sel")
    A("L_spin:")
    A("    ds_read_b128 v[10:13], v8 offset:16")
    A("    s_branch L_chk")
    A("L_first:")
    A("    s_barrier")
    A("    s_mov_b64 vcc, 0")
    A(f"    s_branch L_v{d0}")
    A("L_drain:")
    per = 8 if noe else 9
    nd = lagc
    assert (nd - 1) * per <= 63
    for k in range(nd - 1, -1, -1):
        A(f"    v_mov_b32 v9, {256 - k}")
        A(f"    s_waitcnt vmcnt({k * per})")
        A("    ds_write_b32 v8, v9")
    if tl: A("    s_memrealtime s[62:63]")
    A("    s_branch L_exit")
    if ctl:
        A("L_ctl:")
        A("    s_add_u32 s60, s56, 0x200000")
        A("    s_addc_u32 s61, s57, 0")
        A("    s_mov_b32 s62, 0x100000")
        A("    s_mov_b32 s63, 0x20000")
        A("    s_lshr_b32 s30, s2, 3")
        A("    s_lshl_b32 s30, s30, 8")
        A("    s_and_b32 s31, s2, 7")
        A("    s_lshl_b32 s31, s31, 2")
        A("    s_or_b32 s30, s30, s31")
        A("    v_mov_b32 v2, s30")
        A("    s_mov_b64 exec, 1")
        m = sum(1 << (c // P) for c in CAL)
        A(f"    s_mov_b32 s32, {m & 0xffffffff:#x}")
        A(f"    s_mov_b32 s33, {m >> 32:#x}")
        A(f"    s_lshl_b64 s[34:35], s[32:33], {DL // P}")
        A(f"    s_cmp_ge_u32 s2, {NS}")
        A("    s_cselect_b64 s[32:33], 0, s[32:33]")
        A("    s_mov_b32 s36, 0")
        A("    s_mov_b32 s37, 0")
        A(f"    s_mov_b32 s48, {min(CAL)}")
        A("L_k0:")
        if csleep: A(f"    s_sleep {csleep}")
        A("    ds_read_b32 v9, v8")
        A("    s_waitcnt lgkmcnt(0)")
        A("    v_readfirstlane_b32 s47, v9")
        A("    s_cmp_gt_i32 s48, s47")
        A("    s_cbranch_scc1 L_k0")
        A("    s_memrealtime s[44:45]")
        A(f"    s_lshr_b32 s38, s48, {P.bit_length() - 1}")
        A("    s_bitcmp1_b64 s[32:33], s38")
        A("    s_waitcnt lgkmcnt(0)")
        A("    s_cbranch_scc0 L_knp")
        A("    s_lshl_b32 s46, s48, 10")
        A("    v_mov_b32 v3, s44")
        A(f"    buffer_store_dword v3, v2, s[60:63], s46 offen {spol}")
        A("L_knp:")
        A("    s_cmp_eq_u32 s36, 0")
        A("    s_cbranch_scc1 L_knc")
        A(f"    s_mul_i32 s39, s47, {slope}")
        A("    s_lshr_b32 s39, s39, 4")
        A("    s_add_u32 s39, s39, s37")
        A("    s_sub_u32 s39, s44, s39")
        A(f"    s_mov_b32 s41, {-d0}")
        for t in TH:
            A(f"    s_cmp_gt_i32 s39, {t}")
            A("    s_addc_u32 s41, s41, 0")
        A("    v_mov_b32 v4, s41")
        A("    ds_write_b32 v8, v4 offset:12")
        if tl:
            A(f"    s_lshr_b32 m0, s48, 2\n    s_nop 0\n    v_writelane_b32 v14, s39, m0")
        A("L_knc:")
        A("    s_bitcmp1_b64 s[34:35], s38")
        A("    s_cbranch_scc0 L_knr")
        A(f"    s_sub_u32 s46, s48, {DL}")
        A(f"    s_mul_i32 s39, s46, {slope}")
        A("    s_lshr_b32 s39, s39, 4")
        A("    s_lshl_b32 s46, s46, 10")
        for i in range(NS // 8):
            A(f"    s_buffer_load_dwordx8 s[{64+8*i}:{71+8*i}], s[60:63], s46")
            if i < NS // 8 - 1: A("    s_add_u32 s46, s46, 256")
        A("    s_mov_b32 s40, 0")
        A("    s_mov_b32 s41, 0")
        A("    s_waitcnt lgkmcnt(0)")
        for i in range(NS):
            A(f"    s_sub_u32 s42, s44, s{64+i}")
            A("    s_cmp_lt_u32 s42, 2000")
            A("    s_cselect_b32 s42, s42, 0")
            A("    s_addc_u32 s41, s41, 0")
            A("    s_add_u32 s40, s40, s42")
        A(f"    s_lshr_b32 s40, s40, {NS.bit_length() - 1}")
        A("    s_sub_u32 s40, s44, s40")
        A("    s_sub_u32 s40, s40, s39")
        if bias: A(f"    s_add_u32 s40, s40, {bias}")
        A(f"    s_cmp_ge_u32 s41, {NS * 3 // 4}")
        A("    s_cselect_b32 s37, s40, s37")
        A("    s_cselect_b32 s36, 1, s36")
        A("L_knr:")
        A(f"    s_add_u32 s48, s48, {P}")
        A(f"    s_cmp_le_u32 s48, {last}")
        A("    s_cbranch_scc1 L_k0")
        A("    s_mov_b64 exec, -1")
        A("    s_branch L_exit")
    A("L_cons:")
    if ctl:
        A("    s_cmp_eq_u32 s3, 5")
        A("    s_cbranch_scc1 L_ctl")
    A("    s_sub_u32 s28, s3, 1")
    if pre:
        A("    s_lshr_b32 s30, s2, 3")
        A("    s_lshl_b32 s30, s30, 11")
        A("    v_and_b32 v6, 127, v0")
        A("    v_lshl_add_u32 v6, v6, 4, s30")
        A("    s_bitcmp1_b32 s28, 1")
        A("    s_cselect_b32 s30, s12, s10")
        A("    s_cselect_b32 s31, s13, s11")
        A("    global_load_dwordx4 v[44:47], v6, s[30:31]")
    A("    s_lshl_b32 s41, s2, 12")
    A("    s_add_u32 s32, s4, s41")
    A("    s_addc_u32 s33, s5, 0")
    A("    s_mov_b32 s34, 4096")
    A("    s_mov_b32 s35, 0x20000")
    A("    s_add_u32 s36, s14, s41")
    A("    s_addc_u32 s37, s15, 0")
    A("    s_mov_b32 s38, 2048")
    A("    s_mov_b32 s39, 0x20000")
    A("    s_lshl_b32 s29, s28, 6")
    A("    v_lshlrev_b32 v6, 8, v4")
    A("    v_lshl_add_u32 v6, v5, 4, v6")
    A("    v_add_u32 v6, s29, v6")
    A("    v_lshrrev_b32 v7, 2, v4")
    A("    v_xor_b32 v1, s28, v7")
    A("    v_lshlrev_b32 v1, 6, v1")
    A("    v_lshl_add_u32 v1, v7, 8, v1")
    A("    v_and_b32 v7, 3, v4")
    A("    v_lshl_add_u32 v1, v7, 4, v1")
    A("    v_lshl_add_u32 v1, v5, 10, v1")
    A("    v_and_b32 v2, 63, v0")
    A("    v_lshlrev_b32 v2, 4, v2")
    A(f"    v_add_u32 v3, {XCH}, v2")
    A(f"    v_add_u32 v2, {ERING}, v2")
    A("    s_lshl_b32 s29, s28, 2")
    A("    v_add_u32 v7, s29, v8")
    A("    v_mov_b32 v4, v8")
    A("    v_mov_b32 v5, 1")
    A("    s_lshl_b32 s30, s28, 10")
    A("    s_mov_b32 s49, 0x3db504f3                ; 128^-0.5")
    A("    s_mov_b32 s50, 0x3fb8aa3b                ; log2(e)")
    A("    s_mov_b32 s48, 0                         ; chunk")
    A("    s_mov_b32 s47, 0")
    A("    s_mov_b32 s42, 0")
    def phase(tag):
        for i in range(8): A(f"    v_mov_b32 v{12+i}, 0")
        A(f"L_c{tag}:")
        A("    s_and_b32 s45, s48, 15")
        A("    s_lshl_b32 s46, s45, 13")
        A("    s_lshl_b32 s45, s45, 10")
        A("    v_add_u32 v10, s46, v1")
        A("    v_add_u32 v11, s45, v2")
        A("    s_add_u32 s48, s48, 1")
        A("    v_mov_b32 v32, s48")
        A("    s_cmp_le_i32 s48, s47")
        A(f"    s_cbranch_scc1 L_r{tag}")
        A(f"L_p{tag}:")
        if sleep: A(f"    s_sleep {sleep}")
        A("    ds_read_b32 v9, v8")
        A("    s_waitcnt lgkmcnt(0)")
        A("    v_readfirstlane_b32 s47, v9")
        A("    s_cmp_gt_i32 s48, s47")
        A(f"    s_cbranch_scc1 L_p{tag}")
        A(f"L_r{tag}:")
        A("    ds_read_b128 v[20:23], v11")
        for t in range(2):
            for h in range(2):
                r = 24 + 4 * t + 2 * h
                A(f"    ds_read_b64_tr_b16 v[{r}:{r+1}], v10 offset:{h*4096 + t*8}")
        A("    ds_write_b32 v7, v32 offset:16")
        A("    s_and_b32 s45, s48, 63")
        for t in range(2):
            A(f"    s_waitcnt lgkmcnt({3 - 2*t})")
            a, b = f"v[20:23]", f"v[{24+4*t}:{27+4*t}]"
            if tag == "k": a, b = b, a
            A(f"    v_mfma_f32_16x16x32_bf16 v[{12+4*t}:{15+4*t}], {a}, {b}, v[{12+4*t}:{15+4*t}]")
        A(f"    s_cbranch_scc1 L_c{tag}")
    A("L_bh:")
    A("    buffer_load_dwordx4 v[36:39], v6, s[32:35], s42 offen")
    phase("k")
    A("    s_nop 5")
    for i in range(4): A(f"    v_cvt_pk_bf16_f32 v{20+i}, v{12+2*i}, v{13+2*i}")
    A("    s_waitcnt vmcnt(0)")
    A("    v_add_u32 v10, s30, v3")
    A("    v_mfma_f32_16x16x32_bf16 v[28:31], v[20:23], v[36:39], 0")
    A("    s_nop 7")
    A("    ds_write_b128 v10, v[28:31]")
    A("    ds_add_u32 v4, v5 offset:4")
    A("L_ps:")
    A("    ds_read_b32 v9, v4 offset:4")
    A("    s_waitcnt lgkmcnt(0)")
    A("    v_readfirstlane_b32 s45, v9")
    A("    s_cmp_lt_u32 s45, 256")
    A("    s_cbranch_scc1 L_ps")
    for w in range(4): A(f"    ds_read_b128 v[{12+4*w}:{15+4*w}], v3 offset:{w*1024}")
    A("    v_add_u32 v3, 4096, v3")
    A("    v_add_u32 v4, 4, v4")
    A("    s_waitcnt lgkmcnt(0)")
    for i in (0, 2):
        A(f"    v_pk_add_f32 v[{12+i}:{13+i}], v[{12+i}:{13+i}], v[{16+i}:{17+i}]")
        A(f"    v_pk_add_f32 v[{20+i}:{21+i}], v[{20+i}:{21+i}], v[{24+i}:{25+i}]")
    for i in (0, 2):
        A(f"    v_pk_add_f32 v[{28+i}:{29+i}], v[{12+i}:{13+i}], v[{20+i}:{21+i}]")
    def rnd():
        A("    v_cvt_pk_bf16_f32 v24, v28, v29")
        A("    v_cvt_pk_bf16_f32 v25, v30, v31")
        A("    v_lshlrev_b32 v28, 16, v24")
        A("    v_and_b32 v29, 0xffff0000, v24")
        A("    v_lshlrev_b32 v30, 16, v25")
        A("    v_and_b32 v31, 0xffff0000, v25")
    rnd()
    for i in range(4): A(f"    v_mul_f32 v{28+i}, s49, v{28+i}")
    rnd()
    def xreduce(op):
        for sw in ("16", "32"):
            A("    v_mov_b32 v25, v24")
            A("    s_nop 1")
            A(f"    v_permlane{sw}_swap_b32 v24, v25")
            A("    s_nop 1")
            A(f"    {op} v24, v24, v25")
    A("    v_max3_f32 v24, v28, v29, v30")
    A("    v_max_f32 v24, v24, v31")
    xreduce("v_max_f32")
    for i in range(4): A(f"    v_sub_f32 v{28+i}, v{28+i}, v24")
    for i in range(4): A(f"    v_mul_f32 v{28+i}, s50, v{28+i}")
    for i in range(4): A(f"    v_exp_f32 v{28+i}, v{28+i}")
    A("    s_nop 0")
    A("    v_add_f32 v24, v28, v29")
    A("    v_add_f32 v25, v30, v31")
    A("    v_add_f32 v24, v24, v25")
    xreduce("v_add_f32")
    A("    v_rcp_f32 v24, v24")
    A("    s_nop 0")
    for i in range(4): A(f"    v_mul_f32 v{28+i}, v24, v{28+i}")
    A("    v_mov_b32 v34, v44")
    A("    v_mov_b32 v35, v45")
    A("    v_cvt_pk_bf16_f32 v44, v28, v29")
    A("    v_cvt_pk_bf16_f32 v45, v30, v31")
    A("    s_add_u32 s42, s42, 2048")
    A("    s_cmp_lt_u32 s42, 4096")
    A("    s_cbranch_scc1 L_bh")
    A("L_bv:")
    phase("v")
    A("    s_nop 5")
    for i in range(4): A(f"    v_cvt_pk_bf16_f32 v{20+i}, v{12+2*i}, v{13+2*i}")
    A("    v_mfma_f32_16x16x16_bf16 v[24:27], v[20:21], v[34:35], 0")
    A("    s_nop 0")
    A("    v_mfma_f32_16x16x16_bf16 v[28:31], v[22:23], v[34:35], 0")
    A("    s_nop 5")
    for i in range(4): A(f"    v_cvt_pk_bf16_f32 v{40+i}, v{24+2*i}, v{25+2*i}")
    if defer:
        A("    s_cmp_lt_u32 s48, 256")
        A("    s_cbranch_scc0 L_st")
        for i in range(4): A(f"    v_mov_b32 v{36+i}, v{40+i}")
        A("    v_mov_b32 v34, v44")
        A("    v_mov_b32 v35, v45")
        A("    s_branch L_bv")
        A("L_st:")
        A(f"    buffer_store_dwordx4 v[36:39], v6, s[36:39], 0 offen {opol}".rstrip())
        A("    s_add_u32 s36, s36, 2048")
        A("    s_addc_u32 s37, s37, 0")
        A(f"    buffer_store_dwordx4 v[40:43], v6, s[36:39], 0 offen {opol}".rstrip())
    else:
        A(f"    buffer_store_dwordx4 v[40:43], v6, s[36:39], 0 offen {opol}".rstrip())
        A("    s_add_u32 s36, s36, 2048")
        A("    s_addc_u32 s37, s37, 0")
        A("    v_mov_b32 v34, v44")
        A("    v_mov_b32 v35, v45")
        A("    s_cmp_lt_u32 s48, 256")
        A("    s_cbranch_scc1 L_bv")
    A("L_exit:")
    if stamps:
        A("    s_waitcnt vmcnt(0)")
        A("    s_memrealtime s[54:55]")
        A("    s_mul_i32 s58, s2, " + str(NW) + "\n    s_add_u32 s58, s58, s3\n    s_lshl_b32 s58, s58, 4\n    v_mov_b32 v1, s58")
        A("    s_waitcnt lgkmcnt(0)")
        if tl:
            A("    v_writelane_b32 v15, s62, 2\n    v_writelane_b32 v15, s54, 3")
            A("    v_and_b32 v2, 63, v0\n    v_lshlrev_b32 v2, 2, v2")
            A("    s_lshl_b32 s60, s58, 5\n    s_add_u32 s60, s60, 0x100000\n    v_add_u32 v2, s60, v2")
            A("    global_store_dword v2, v14, s[56:57]")
            A("    global_store_dword v2, v15, s[56:57] offset:256")
        A("    s_getreg_b32 s59, hwreg(HW_REG_XCC_ID, 0, 4)")
        A("    s_lshl_b32 s59, s59, 28\n    s_or_b32 s55, s55, s59")
        for i in range(4): A(f"    v_mov_b32 v{8+i}, s{52+i}")
        A("    s_mov_b64 exec, 1")
        A("    global_store_dwordx4 v1, v[8:11], s[56:57]")
    A("L_end:")
    A("    s_endpgm")
    A(f""".section .rodata,"a"
.p2align 6
.amdhsa_kernel {NAME}_kernel
  .amdhsa_next_free_vgpr 48
  .amdhsa_next_free_sgpr 96
  .amdhsa_accum_offset 48
  .amdhsa_group_segment_fixed_size 0
  .amdhsa_kernarg_size 64
  .amdhsa_user_sgpr_count 2
  .amdhsa_user_sgpr_kernarg_segment_ptr 1
  .amdhsa_system_sgpr_workgroup_id_x 1
.end_amdhsa_kernel""")
    return "\n".join(o) + "\n"
if __name__ == "__main__":
    outdir = sys.argv[1]
    for spec in sys.argv[2:]:
        name, kv = spec.split(":")
        d = {}
        for x in kv.split(","):
            if not x: continue
            k, v = x.split("=")
            d[k] = int(v) if v.lstrip("-").isdigit() else v.replace("+", " ")
        open(f"{outdir}/{name}.s", "w").write(gen(**d))
```

```python
import sys
from gen2 import HEADER, NAME
def gen(pol="nt", epol="", opol="", stamps=0, tl=0, pre=1, cpre=1, noe=0, sleep=0, prio=1,
        lv="19.20.21.22", th="-35.35.100", d0=1, P=4, cal="8.64.128.192", DL=16, slope=428, bias=0, ctl=1, csleep=4, spol="sc0 sc1", NS=16, defer=0, last=250, dbg=-1, vt=0, qe=0, sv=-1, sc=0, g2=0, g2at=160, ki=0, icl=40, io="dbfa", bar=2, lz=0, lfirst=0, qpol="", qgap=0):
    CAL = [int(x) for x in str(cal).split(".")]
    assert all(c % P == 0 for c in CAL) and DL % P == 0
    LV = [int(x) for x in str(lv).split(".")]
    TH = [int(x) for x in str(th).replace("m", "-").split(".")]
    assert len(TH) == len(LV) - 1 and all(17 <= n <= 32 for n in LV)
    NW = 6 if ctl else 5
    assert bar == 2 or lz
    ERING = 131072
    XCH = ERING + 16384
    FLG = XCH + 8192
    LDS = FLG + 64
    o = []; A = o.append
    A(HEADER + f"; @launch grid=(256,1,1) block=({NW*64},1,1) lds={LDS}")
    A('.amdgcn_target "amdgcn-amd-amdhsa--gfx950"\n.text')
    A(f".globl {NAME}_kernel\n.p2align 8\n.type {NAME}_kernel,@function\n{NAME}_kernel:")
    if stamps or dbg >= 0:
        A("    s_memrealtime s[52:53]")
    if stamps or ctl:
        A("    s_load_dwordx2 s[56:57], s[0:1], 56")
    A("    s_load_dwordx8 s[4:11], s[0:1], 0        ; q k v e")
    A("    s_load_dwordx4 s[12:15], s[0:1], 32      ; f out")
    A("    v_lshrrev_b32 v3, 6, v0")
    A("    v_and_b32 v4, 15, v0                     ; lane & 15")
    A("    v_readfirstlane_b32 s3, v3")
    A("    v_bfe_u32 v5, v0, 4, 2                   ; g")
    A("    s_cmp_ge_u32 s2, 256")
    A("    s_cbranch_scc1 L_end")
    A(f"    v_mov_b32 v8, {FLG}")
    def stub(part):
        if cpre and part == 0:
            A("    s_getpc_b64 s[28:29]")
            A("L_pc:")
            A("    v_subrev_u32 v6, 64, v0")
            A("    v_min_u32 v7, (L_end - L_pc) / 64, v6")
            A("    v_lshlrev_b32 v7, 6, v7")
            A("    global_load_dword v40, v7, s[28:29]")
        if lfirst == 1 and part == 0:
            A("    s_branch L_stub2"); return
        if not lz:
            A("    v_lshl_add_u32 v7, v4, 2, v8")
            A("    v_mov_b32 v9, 0")
            A("    ds_write_b32 v7, v9")
        if qe == 1:
            A("    v_and_b32 v6, 7, v4")
            A("    v_lshlrev_b32 v6, 8, v6")
            A("    v_lshl_add_u32 v6, v5, 4, v6")
            A("    v_and_b32 v3, 3, v3")
            A("    v_lshl_add_u32 v6, v3, 6, v6")
            A("    v_lshl_add_u32 v6, s2, 12, v6")
        if pre == 3:
            A("    s_lshr_b32 s30, s2, 3")
            A("    s_lshl_b32 s30, s30, 11")
            A("    v_and_b32 v7, 31, v0")
            A("    v_lshl_add_u32 v7, v7, 6, s30")
            A("    s_cmp_eq_u32 s3, 5")
        if pre == 2:
            A("    s_lshr_b32 s30, s2, 3")
            A("    s_lshl_b32 s30, s30, 11")
            A("    v_and_b32 v7, 127, v0")
            A("    v_lshl_add_u32 v7, v7, 4, s30")
            A("    s_bitcmp1_b32 s3, 1")
        A("    s_waitcnt lgkmcnt(0)")
        if pre == 3:
            A("    s_cbranch_scc0 L_npe")
            A("    global_load_dword v44, v7, s[10:11]")
            A("L_npe:")
        if pre == 2:
            A("    s_cselect_b32 s30, s12, s10")
            A("    s_cselect_b32 s31, s13, s11")
            A("    global_load_dwordx4 v[44:47], v7, s[30:31]")
        if qe == 1:
            A(f"    global_load_dwordx4 v[36:39], v6, s[4:5] {qpol}")
            A(f"    global_load_dwordx4 v[48:51], v6, s[4:5] offset:2048 {qpol}")
        if qe == 3:
            A("    s_lshl_b32 s30, s2, 12\n    s_and_b32 s31, s3, 3\n    s_lshl_b32 s31, s31, 10\n    s_add_u32 s30, s30, s31")
            A("    s_add_u32 s30, s4, s30\n    s_addc_u32 s31, s5, 0")
            for i in range(16): A(f"    s_load_dword s64, s[30:31], {i*64}")
        A("    s_barrier")
        if qe == 3: A("    s_waitcnt lgkmcnt(0)")
        A("    s_branch L_cons")
    A("    s_cmp_eq_u32 s3, 0")
    A("    s_cbranch_scc1 L_loader")
    stub(0)
    A("L_loader:")
    if lz:
        A("    v_lshl_add_u32 v7, v4, 2, v8")
        A("    v_mov_b32 v9, 0")
        A("    ds_write_b32 v7, v9")
    A("    v_lshlrev_b32 v1, 2, v5")
    A("    v_xor_b32 v1, v1, v4")
    A("    v_lshlrev_b32 v1, 4, v1")
    A("    v_lshl_add_u32 v1, v5, 8, v1")
    XB = [int(c, 20) for c in io]
    assert io in ("dbfa", "bdfa", "dafb", "dafc", "adfb")
    split = io[3] == "a"
    lo, hi = sorted(XB[:2])
    STR = {lo: 1024, hi: 2048}
    imm = lambda j: (j & 1) * STR[XB[0]] + ((j >> 1) & 1) * STR[XB[1]]
    comp = lambda j: (j & 1) * (1 << XB[0]) + ((j >> 1) & 1) * (1 << XB[1]) - imm(j)
    VO = {0: 1}
    for j in range(4):
        if comp(j) not in VO:
            VO[comp(j)] = (2, 3, 7)[len(VO) - 1]
            A(f"    v_add_u32 v{VO[comp(j)]}, {comp(j)}, v1")
    stepbits = sum(1 << k for k in range(10, 20) if k not in XB)
    E1 = 16 if split else (1 << XB[3]) >> 7
    A("    v_lshlrev_b32 v6, 12, v4")
    A("    v_and_b32 v10, 1, v5")
    A("    v_lshl_add_u32 v6, v10, 6, v6")
    A("    v_lshrrev_b32 v10, 1, v5")
    A("    v_lshl_add_u32 v6, v10, 8, v6")
    A("    s_lshl_b32 s40, s2, 20")
    A("    s_mov_b32 s18, 0x100000")
    A("    s_mov_b32 s19, 0x20000")
    A("    s_mov_b32 s26, 0x10000")
    A("    s_mov_b32 s27, 0x20000")
    A("    s_mov_b32 s43, 0")
    A("    s_mov_b32 s44, 0")
    A("    s_mov_b32 s45, 0")
    A("    s_mov_b32 s48, 0                         ; chunk")
    A(f"    s_mov_b32 s51, {bar}")
    A("    s_mov_b32 m0, 0")
    if prio: A("    s_setprio 3")
    lagc = 3
    A(f"    v_mov_b32 v9, -2")
    if max(LV) > 24: A(f"    v_mov_b32 v17, -3")
    if tl: A("    v_mov_b32 v14, 0\n    v_mov_b32 v15, s52")
    A("    s_waitcnt lgkmcnt(0)")
    A("    s_add_u32 s16, s6, s40")
    A("    s_addc_u32 s17, s7, 0")
    A("    s_mov_b32 s24, s10")
    A("    s_mov_b32 s25, s11")
    if tl == 2: A("    s_memrealtime s[60:61]\n    s_waitcnt lgkmcnt(0)\n    v_writelane_b32 v14, s60, 0\n    s_mov_b32 s62, 0")
    def cnt(p, n):
        q = 1600 + p - n
        return n - 1 + (0 if noe else sum(2 for c in range(90, 101) if q <= 16 * c + 3 < 1600 + p))
    def body(vi, N):
        jp = (N - 1) % 8
        pv = 9 if N <= 24 else 17
        A(f"L_v{vi}:")
        for p in range(16):
            A(f"    s_waitcnt vmcnt({cnt(p, N)})")
            A(f"    buffer_load_dwordx4 v{VO[comp(p%4)]}, s[16:19], s43 offen offset:{imm(p%4)} {pol} lds")
            if p % 8 == jp: A(f"    ds_write_b32 v8, v{pv}")
            if tl == 2 and p % 4 == 2:
                A("    s_mov_b32 s63, m0\n    s_memrealtime s[60:61]\n    s_add_u32 s62, s62, 1\n    s_min_u32 m0, s62, 63\n    s_waitcnt lgkmcnt(0)\n    v_writelane_b32 v14, s60, m0\n    s_mov_b32 m0, s63")
            if p == 1:
                A("    s_lshr_b32 s46, s45, 3")
                A(f"    s_add_u32 s46, s46, {ERING}")
            if p == 3:
                if not noe:
                    A("    s_mov_b32 m0, s46")
                A(f"    s_add_u32 s43, s43, {1 << XB[2]}")
                if not noe:
                    A(f"    buffer_load_dwordx4 v6, s[24:27], s44 offen {epol} lds")
                    A(f"    s_add_u32 m0, s46, {1024 - E1}")
                    A("    s_nop 0")
                    A(f"    buffer_load_dwordx4 v6, s[24:27], s44 offen offset:{E1} {epol} lds")
                A("    s_add_u32 m0, s45, 4096")
            if p == 7:
                A("    s_add_u32 m0, s45, 8192")
                A(f"    s_sub_u32 s43, s43, {(1 << XB[2]) - (1 << XB[3])}")
            if p in (7, 15):
                A("    v_add_u32 v9, 1, v9")
                if max(LV) > 24: A("    v_add_u32 v17, 1, v17")
            if p == 8:
                A("    ds_read_b128 v[10:13], v8 offset:16")
                A("    ds_read_b32 v16, v8 offset:12")
            if p == 9:
                A(f"    s_or_b32 s42, s43, {0xfffff ^ stepbits:#x}")
                A("    s_add_u32 s42, s42, 1")
                A(f"    s_and_b32 s42, s42, {stepbits:#x}")
            if p == 10:
                A("    s_bfe_u32 s44, s42, 0xc0007")
                A("    s_add_u32 s48, s48, 2")
            if p == 11:
                A("    s_add_u32 m0, s45, 12288")
                A(f"    s_add_u32 s43, s43, {1 << XB[2]}")
            if p == 12:
                A("    s_waitcnt lgkmcnt(1)" if jp in (1, 2, 3, 4) else "    s_waitcnt lgkmcnt(0)")
                A("    v_min3_u32 v10, v10, v11, v12")
                A("    v_min_u32 v10, v10, v13")
                A("    v_readfirstlane_b32 s50, v16")
                A("    v_readfirstlane_b32 s47, v10")
            if p == 13:
                A("    s_add_u32 s45, s45, 0x4000")
                A("    s_and_b32 s45, s45, 0x1ffff")
                A("    s_add_u32 s47, s47, 14")
            if p == 14:
                if tl == 1:
                    A("    s_mov_b32 s63, m0\n    s_memrealtime s[60:61]\n    s_sub_u32 s62, s48, 1\n    s_lshr_b32 m0, s62, 2\n    s_waitcnt lgkmcnt(0)\n    v_writelane_b32 v14, s60, m0\n    s_mov_b32 m0, s63")
                A("    s_cmp_lt_u32 s47, s48")
                A("    s_cselect_b32 s49, 99, s50")
                A("    s_cmp_eq_u32 s48, s51")
                A("    s_cselect_b32 s49, 99, s49")
                A(f"    s_cmp_eq_u32 s49, {vi - d0}")
            if p == 15:
                A("    s_mov_b32 m0, s45")
                A("    s_mov_b32 s43, s42")
        A(f"    s_cbranch_scc1 L_v{vi}")
    body(d0, LV[d0])
    A("L_slow:")
    A("    s_cmp_eq_u32 s48, s51")
    A("    s_cbranch_scc1 L_event")
    A("L_chk:")
    A("    s_cmp_lt_u32 s47, s48")
    A("    s_cbranch_scc1 L_spin")
    others = [v for v in range(len(LV)) if v != d0]
    A("    s_cmp_eq_u32 s50, 0")
    A(f"    s_cbranch_scc1 L_v{d0}")
    for v in others[1:]:
        A(f"    s_cmp_eq_u32 s50, {v - d0}")
        A(f"    s_cbranch_scc1 L_v{v}")
    for v in others:
        body(v, LV[v])
        A("    s_branch L_slow")
    A("L_spin:")
    A("    ds_read_b128 v[10:13], v8 offset:16")
    A("    s_waitcnt lgkmcnt(0)")
    A("    v_min3_u32 v10, v10, v11, v12")
    A("    v_min_u32 v10, v10, v13")
    A("    v_add_u32 v10, 14, v10")
    A("    s_nop 0")
    A("    v_readfirstlane_b32 s47, v10")
    A("    s_branch L_chk")
    A("L_event:")
    A(f"    s_cmp_eq_u32 s48, {bar}")
    A("    s_cbranch_scc0 L_ev2")
    A("    s_barrier")
    A("    s_movk_i32 s51, 128")
    A(f"    s_branch L_v{d0}")
    A("L_ev2:")
    A("    s_add_u32 s16, s8, s40")
    A("    s_addc_u32 s17, s9, 0")
    A("    s_mov_b32 s24, s12")
    A("    s_mov_b32 s25, s13")
    A("    s_movk_i32 s51, 256")
    A("    s_cmp_lg_u32 s48, 256")
    A("    s_cbranch_scc1 L_chk")
    A("L_drain:")
    for k in range(3 if max(LV) > 24 else 2, -1, -1):
        A(f"    v_mov_b32 v9, {256 - k}")
        A(f"    s_waitcnt vmcnt({8 * k + (0 if noe or k < 2 else 2)})")
        A("    ds_write_b32 v8, v9")
    if tl: A("    s_memrealtime s[62:63]")
    A("    s_branch L_exit")
    if ctl:
        A("L_ctl:")
        A("    s_add_u32 s60, s56, 0x200000")
        A("    s_addc_u32 s61, s57, 0")
        A("    s_mov_b32 s62, 0x100000")
        A("    s_mov_b32 s63, 0x20000")
        A("    s_lshr_b32 s30, s2, 3")
        A("    s_lshl_b32 s30, s30, 8")
        A("    s_and_b32 s31, s2, 7")
        A("    s_lshl_b32 s31, s31, 2")
        A("    s_or_b32 s30, s30, s31")
        A("    v_mov_b32 v2, s30")
        A("    s_mov_b64 exec, 1")
        if vt:
            A("    s_lshl_b32 s40, s2, 20")
            A("    v_mov_b32 v5, s40")
            A("    global_load_dword v6, v5, s[8:9] nt")
        if pre == 3:
            A("    s_lshl_b32 s40, s2, 20")
            A("    v_mov_b32 v5, s40")
            A("    s_mul_i32 s28, s2, 3")
            A("    s_lshr_b32 s28, s28, 5")
            A("    s_lshl_b32 s28, s28, 2")
            A(f"    s_add_u32 s28, s28, 16")
        m = sum(1 << (c // P) for c in CAL)
        A(f"    s_mov_b32 s32, {m & 0xffffffff:#x}")
        A(f"    s_mov_b32 s33, {m >> 32:#x}")
        A(f"    s_lshl_b64 s[34:35], s[32:33], {DL // P}")
        A(f"    s_cmp_ge_u32 s2, {NS}")
        A("    s_cselect_b64 s[32:33], 0, s[32:33]")
        if dbg >= 0: A("    s_mov_b32 s39, 0")
        if ki: A("    s_mov_b32 s29, 0")
        A("    s_mov_b32 s36, 0")
        A("    s_mov_b32 s37, 0")
        A(f"    s_mov_b32 s48, {min(CAL)}")
        if sv >= 0:
            A(f"    v_mov_b32 v4, {sv - d0}")
            A("    ds_write_b32 v8, v4 offset:12")
            A("L_ks:")
            A("    ds_read_b32 v9, v8\n    s_waitcnt lgkmcnt(0)\n    v_readfirstlane_b32 s47, v9")
            A(f"    s_cmp_lt_i32 s47, {sc}\n    s_cbranch_scc1 L_ks")
            A("    v_mov_b32 v4, 0\n    ds_write_b32 v8, v4 offset:12")
        A("L_k0:")
        if csleep: A(f"    s_sleep {csleep}")
        A("    ds_read_b32 v9, v8")
        A("    s_waitcnt lgkmcnt(0)")
        A("    v_readfirstlane_b32 s47, v9")
        A("    s_cmp_gt_i32 s48, s47")
        A("    s_cbranch_scc1 L_k0")
        A("    s_memrealtime s[44:45]")
        A(f"    s_lshr_b32 s38, s48, {P.bit_length() - 1}")
        A("    s_bitcmp1_b64 s[32:33], s38")
        A("    s_waitcnt lgkmcnt(0)")
        A("    s_cbranch_scc0 L_knp")
        A("    s_lshl_b32 s46, s48, 10")
        A("    v_mov_b32 v3, s44")
        A(f"    buffer_store_dword v3, v2, s[60:63], s46 offen {spol}")
        A("L_knp:")
        if pre == 3:
            A("    s_cmp_eq_u32 s48, s28")
            A("    s_cbranch_scc0 L_knf")
            A("    global_load_dword v6, v5, s[8:9] nt")
            A("    s_mov_b64 exec, -1")
            A("    global_load_dword v44, v7, s[12:13]")
            A("    s_mov_b64 exec, 1")
            A("L_knf:")
        A("    s_cmp_eq_u32 s36, 0")
        A("    s_cbranch_scc1 L_knc")
        A(f"    s_mul_i32 s39, s47, {slope}")
        A("    s_lshr_b32 s39, s39, 4")
        A("    s_add_u32 s39, s39, s37")
        A("    s_sub_u32 s39, s44, s39")
        if ki:
            A("    s_add_i32 s29, s29, s39")
            A(f"    s_min_i32 s29, s29, {icl << ki}\n    s_max_i32 s29, s29, {-(icl << ki)}")
            A(f"    s_ashr_i32 s41, s29, {ki}\n    s_add_i32 s39, s39, s41")
        if g2:
            A(f"    s_cmp_ge_u32 s48, {g2at}\n    s_cselect_b32 s41, {g2}, 0\n    s_lshl_b32 s39, s39, s41")
        A(f"    s_mov_b32 s41, {-d0}")
        for t in TH:
            A(f"    s_cmp_gt_i32 s39, {t}")
            A("    s_addc_u32 s41, s41, 0")
        A("    v_mov_b32 v4, s41")
        A("    ds_write_b32 v8, v4 offset:12")
        if tl:
            A(f"    s_lshr_b32 m0, s48, 2\n    s_nop 0\n    v_writelane_b32 v14, s39, m0")
        A("L_knc:")
        if dbg >= 0:
            A("    s_sub_u32 s42, s44, s52\n    s_lshl_b32 s43, s39, 16\n    s_or_b32 s42, s42, s43\n    s_lshr_b32 m0, s48, 4\n    s_nop 0\n    v_writelane_b32 v14, s42, m0")
        A("    s_bitcmp1_b64 s[34:35], s38")
        A("    s_cbranch_scc0 L_knr")
        A(f"    s_sub_u32 s46, s48, {DL}")
        A(f"    s_mul_i32 s39, s46, {slope}")
        A("    s_lshr_b32 s39, s39, 4")
        A("    s_lshl_b32 s46, s46, 10")
        for i in range(NS // 8):
            A(f"    s_buffer_load_dwordx8 s[{64+8*i}:{71+8*i}], s[60:63], s46")
            if i < NS // 8 - 1: A("    s_add_u32 s46, s46, 256")
        A("    s_mov_b32 s40, 0")
        A("    s_mov_b32 s41, 0")
        A("    s_waitcnt lgkmcnt(0)")
        for i in range(NS):
            A(f"    s_sub_u32 s42, s44, s{64+i}")
            A("    s_cmp_lt_u32 s42, 2000")
            A("    s_cselect_b32 s42, s42, 0")
            A("    s_addc_u32 s41, s41, 0")
            A("    s_add_u32 s40, s40, s42")
        A(f"    s_lshr_b32 s40, s40, {NS.bit_length() - 1}")
        A("    s_sub_u32 s40, s44, s40")
        A("    s_sub_u32 s40, s40, s39")
        if bias: A(f"    s_add_u32 s40, s40, {bias}")
        A(f"    s_cmp_ge_u32 s41, {NS * 3 // 4}")
        A("    s_cselect_b32 s37, s40, s37")
        A("    s_cselect_b32 s36, 1, s36")
        A("L_knr:")
        A(f"    s_add_u32 s48, s48, {P}")
        A(f"    s_cmp_le_u32 s48, {last}")
        A("    s_cbranch_scc1 L_k0")
        A("    s_mov_b64 exec, -1")
        if dbg >= 0:
            A(f"    s_cmp_lg_u32 s2, {dbg}\n    s_cbranch_scc1 L_exit")
            A("    s_load_dwordx2 s[42:43], s[0:1], 48\n    v_and_b32 v1, 63, v0\n    v_lshlrev_b32 v1, 2, v1\n    s_waitcnt lgkmcnt(0)\n    s_mov_b64 exec, 0xffff")
            A("    global_store_dword v1, v14, s[42:43]")
        A("    s_branch L_exit")
    if lfirst == 1:
        A("L_stub2:")
        stub(1)
    A("L_cons:")
    if ctl:
        A("    s_cmp_eq_u32 s3, 5")
        A("    s_cbranch_scc1 L_ctl")
    A("    s_and_b32 s28, s3, 3")
    if pre == 1:
        A("    s_lshr_b32 s30, s2, 3")
        A("    s_lshl_b32 s30, s30, 11")
        A("    v_and_b32 v6, 127, v0")
        A("    v_lshl_add_u32 v6, v6, 4, s30")
        A("    s_bitcmp1_b32 s28, 1")
        A("    s_cselect_b32 s30, s12, s10")
        A("    s_cselect_b32 s31, s13, s11")
        A("    global_load_dwordx4 v[44:47], v6, s[30:31]")
    A("    s_lshl_b32 s41, s2, 12")
    A("    s_add_u32 s32, s4, s41")
    A("    s_addc_u32 s33, s5, 0")
    A("    s_mov_b32 s34, 4096")
    A("    s_mov_b32 s35, 0x20000")
    A("    s_add_u32 s36, s14, s41")
    A("    s_addc_u32 s37, s15, 0")
    A("    s_mov_b32 s38, 2048")
    A("    s_mov_b32 s39, 0x20000")
    A("    s_lshl_b32 s29, s28, 6")
    A("    v_lshlrev_b32 v6, 8, v4")
    A("    v_lshl_add_u32 v6, v5, 4, v6")
    A("    v_add_u32 v6, s29, v6")
    A("    v_lshrrev_b32 v7, 2, v4")
    A("    v_xor_b32 v1, s28, v7")
    A("    v_lshlrev_b32 v1, 6, v1")
    A("    v_lshl_add_u32 v1, v7, 8, v1")
    A("    v_and_b32 v7, 3, v4")
    A("    v_lshl_add_u32 v1, v7, 4, v1")
    A("    v_lshl_add_u32 v1, v5, 11, v1")
    A("    v_and_b32 v2, 63, v0")
    A("    v_lshlrev_b32 v2, 4, v2")
    A(f"    v_add_u32 v3, {XCH}, v2")
    A(f"    v_add_u32 v2, {ERING}, v2")
    A("    s_lshl_b32 s29, s28, 2")
    A("    v_add_u32 v7, s29, v8")
    A("    v_mov_b32 v4, v8")
    A("    v_mov_b32 v5, 1")
    A("    s_lshl_b32 s30, s28, 10")
    A("    s_mov_b32 s49, 0x3db504f3                ; 128^-0.5")
    A("    s_mov_b32 s50, 0x3fb8aa3b                ; log2(e)")
    A("    s_mov_b32 s48, 0                         ; chunk")
    A("    s_mov_b32 s47, 0")
    A("    s_mov_b32 s42, 0")
    if qe == 3 and qgap:
        A(f"    s_mov_b32 s31, {qgap}")
    elif qe >= 2:
        A("    s_mul_i32 s31, s2, 7")
        A("    s_lshr_b32 s31, s31, 5")
        A("    s_add_u32 s31, s31, 4")
    def phase(tag):
        for i in range(8): A(f"    v_mov_b32 v{12+i}, 0")
        A(f"L_c{tag}:")
        A("    s_and_b32 s45, s48, 15")
        A("    s_lshl_b32 s46, s45, 13")
        if split:
            A("    s_mul_i32 s45, s45, 1032")
            A("    s_and_b32 s45, s45, 0x3808")
        else:
            A("    s_lshl_b32 s45, s45, 10")
        A("    v_add_u32 v10, s46, v1")
        A("    v_add_u32 v11, s45, v2")
        A("    s_add_u32 s48, s48, 1")
        if qe >= 2 and tag == "k":
            A("    s_cmp_eq_u32 s48, s31")
            A("    s_cbranch_scc0 L_nq")
            A("    buffer_load_dwordx4 v[36:39], v6, s[32:35], 0 offen")
            A("    buffer_load_dwordx4 v[48:51], v6, s[32:35], 0 offen offset:2048")
            A("L_nq:")
        A("    v_mov_b32 v32, s48")
        A("    s_cmp_le_i32 s48, s47")
        A(f"    s_cbranch_scc1 L_r{tag}")
        A(f"L_p{tag}:")
        if sleep: A(f"    s_sleep {sleep}")
        A("    ds_read_b32 v9, v8")
        A("    s_waitcnt lgkmcnt(0)")
        A("    v_readfirstlane_b32 s47, v9")
        A("    s_cmp_gt_i32 s48, s47")
        A(f"    s_cbranch_scc1 L_p{tag}")
        A(f"L_r{tag}:")
        A("    ds_read2st64_b64 v[20:23], v11 offset1:2" if split else "    ds_read_b128 v[20:23], v11")
        for t in range(2):
            for h in range(2):
                r = 24 + 4 * t + 2 * h
                A(f"    ds_read_b64_tr_b16 v[{r}:{r+1}], v10 offset:{h*1024 + t*8}")
        A("    ds_write_b32 v7, v32 offset:16")
        A("    s_and_b32 s45, s48, 63")
        for t in range(2):
            A(f"    s_waitcnt lgkmcnt({3 - 2*t})")
            a, b = f"v[20:23]", f"v[{24+4*t}:{27+4*t}]"
            if tag == "k": a, b = b, a
            A(f"    v_mfma_f32_16x16x32_bf16 v[{12+4*t}:{15+4*t}], {a}, {b}, v[{12+4*t}:{15+4*t}]")
        A(f"    s_cbranch_scc1 L_c{tag}")
    A("L_bh:")
    if not qe: A("    buffer_load_dwordx4 v[36:39], v6, s[32:35], s42 offen")
    phase("k")
    A("    s_nop 5")
    for i in range(4): A(f"    v_cvt_pk_bf16_f32 v{20+i}, v{12+2*i}, v{13+2*i}")
    A("    s_waitcnt vmcnt(0)")
    A("    v_add_u32 v10, s30, v3")
    A("    v_mfma_f32_16x16x32_bf16 v[28:31], v[20:23], v[36:39], 0")
    A("    s_nop 7")
    A("    ds_write_b128 v10, v[28:31]")
    A("    ds_add_u32 v4, v5 offset:4")
    A("L_ps:")
    A("    ds_read_b32 v9, v4 offset:4")
    A("    s_waitcnt lgkmcnt(0)")
    A("    v_readfirstlane_b32 s45, v9")
    A("    s_cmp_lt_u32 s45, 256")
    A("    s_cbranch_scc1 L_ps")
    for w in range(4): A(f"    ds_read_b128 v[{12+4*w}:{15+4*w}], v3 offset:{w*1024}")
    A("    v_add_u32 v3, 4096, v3")
    A("    v_add_u32 v4, 4, v4")
    A("    s_waitcnt lgkmcnt(0)")
    for i in (0, 2):
        A(f"    v_pk_add_f32 v[{12+i}:{13+i}], v[{12+i}:{13+i}], v[{16+i}:{17+i}]")
        A(f"    v_pk_add_f32 v[{20+i}:{21+i}], v[{20+i}:{21+i}], v[{24+i}:{25+i}]")
    for i in (0, 2):
        A(f"    v_pk_add_f32 v[{28+i}:{29+i}], v[{12+i}:{13+i}], v[{20+i}:{21+i}]")
    def rnd():
        A("    v_cvt_pk_bf16_f32 v24, v28, v29")
        A("    v_cvt_pk_bf16_f32 v25, v30, v31")
        A("    v_lshlrev_b32 v28, 16, v24")
        A("    v_and_b32 v29, 0xffff0000, v24")
        A("    v_lshlrev_b32 v30, 16, v25")
        A("    v_and_b32 v31, 0xffff0000, v25")
    rnd()
    for i in range(4): A(f"    v_mul_f32 v{28+i}, s49, v{28+i}")
    rnd()
    def xreduce(op):
        for sw in ("16", "32"):
            A("    v_mov_b32 v25, v24")
            A("    s_nop 1")
            A(f"    v_permlane{sw}_swap_b32 v24, v25")
            A("    s_nop 1")
            A(f"    {op} v24, v24, v25")
    A("    v_max3_f32 v24, v28, v29, v30")
    A("    v_max_f32 v24, v24, v31")
    xreduce("v_max_f32")
    for i in range(4): A(f"    v_sub_f32 v{28+i}, v{28+i}, v24")
    for i in range(4): A(f"    v_mul_f32 v{28+i}, s50, v{28+i}")
    for i in range(4): A(f"    v_exp_f32 v{28+i}, v{28+i}")
    A("    s_nop 0")
    A("    v_add_f32 v24, v28, v29")
    A("    v_add_f32 v25, v30, v31")
    A("    v_add_f32 v24, v24, v25")
    xreduce("v_add_f32")
    A("    v_rcp_f32 v24, v24")
    A("    s_nop 0")
    for i in range(4): A(f"    v_mul_f32 v{28+i}, v24, v{28+i}")
    if qe:
        for i in range(4): A(f"    v_mov_b32 v{36+i}, v{48+i}")
    A("    v_mov_b32 v34, v44")
    A("    v_mov_b32 v35, v45")
    A("    v_cvt_pk_bf16_f32 v44, v28, v29")
    A("    v_cvt_pk_bf16_f32 v45, v30, v31")
    A("    s_add_u32 s42, s42, 2048")
    A("    s_cmp_lt_u32 s42, 4096")
    A("    s_cbranch_scc1 L_bh")
    A("L_bv:")
    phase("v")
    A("    s_nop 5")
    for i in range(4): A(f"    v_cvt_pk_bf16_f32 v{20+i}, v{12+2*i}, v{13+2*i}")
    A("    v_mfma_f32_16x16x16_bf16 v[24:27], v[20:21], v[34:35], 0")
    A("    s_nop 0")
    A("    v_mfma_f32_16x16x16_bf16 v[28:31], v[22:23], v[34:35], 0")
    A("    s_nop 5")
    for i in range(4): A(f"    v_cvt_pk_bf16_f32 v{40+i}, v{24+2*i}, v{25+2*i}")
    if defer:
        A("    s_cmp_lt_u32 s48, 256")
        A("    s_cbranch_scc0 L_st")
        for i in range(4): A(f"    v_mov_b32 v{36+i}, v{40+i}")
        A("    v_mov_b32 v34, v44")
        A("    v_mov_b32 v35, v45")
        A("    s_branch L_bv")
        A("L_st:")
        A(f"    buffer_store_dwordx4 v[36:39], v6, s[36:39], 0 offen {opol}".rstrip())
        A("    s_add_u32 s36, s36, 2048")
        A("    s_addc_u32 s37, s37, 0")
        A(f"    buffer_store_dwordx4 v[40:43], v6, s[36:39], 0 offen {opol}".rstrip())
    else:
        A(f"    buffer_store_dwordx4 v[40:43], v6, s[36:39], 0 offen {opol}".rstrip())
        A("    s_add_u32 s36, s36, 2048")
        A("    s_addc_u32 s37, s37, 0")
        A("    v_mov_b32 v34, v44")
        A("    v_mov_b32 v35, v45")
        A("    s_cmp_lt_u32 s48, 256")
        A("    s_cbranch_scc1 L_bv")
    A("L_exit:")
    if stamps:
        A("    s_waitcnt vmcnt(0)")
        A("    s_memrealtime s[54:55]")
        A("    s_mul_i32 s58, s2, " + str(NW) + "\n    s_add_u32 s58, s58, s3\n    s_lshl_b32 s58, s58, 4\n    v_mov_b32 v1, s58")
        A("    s_waitcnt lgkmcnt(0)")
        if tl:
            A("    v_writelane_b32 v15, s62, 2\n    v_writelane_b32 v15, s54, 3")
            A("    v_and_b32 v2, 63, v0\n    v_lshlrev_b32 v2, 2, v2")
            A("    s_lshl_b32 s60, s58, 5\n    s_add_u32 s60, s60, 0x100000\n    v_add_u32 v2, s60, v2")
            A("    global_store_dword v2, v14, s[56:57]")
            A("    global_store_dword v2, v15, s[56:57] offset:256")
        A("    s_getreg_b32 s59, hwreg(HW_REG_XCC_ID, 0, 4)")
        A("    s_lshl_b32 s59, s59, 28\n    s_or_b32 s55, s55, s59")
        for i in range(4): A(f"    v_mov_b32 v{8+i}, s{52+i}")
        A("    s_mov_b64 exec, 1")
        A("    global_store_dwordx4 v1, v[8:11], s[56:57]")
    A("L_end:")
    A("    s_endpgm")
    A(f""".section .rodata,"a"
.p2align 6
.amdhsa_kernel {NAME}_kernel
  .amdhsa_next_free_vgpr 52
  .amdhsa_next_free_sgpr 96
  .amdhsa_accum_offset 52
  .amdhsa_group_segment_fixed_size 0
  .amdhsa_kernarg_size 64
  .amdhsa_user_sgpr_count 2
  .amdhsa_user_sgpr_kernarg_segment_ptr 1
  .amdhsa_system_sgpr_workgroup_id_x 1
.end_amdhsa_kernel""")
    return "\n".join(o) + "\n"
if __name__ == "__main__":
    outdir = sys.argv[1]
    for spec in sys.argv[2:]:
        name, kv = spec.split(":")
        d = {}
        for x in kv.split(","):
            if not x: continue
            k, v = x.split("=")
            d[k] = int(v) if v.lstrip("-").isdigit() else v.replace("+", " ")
        open(f"{outdir}/{name}.s", "w").write(gen(**d))
```

```python
import sys
from gen2 import HEADER, NAME

DOC = """;
"""

def gen(stamps=0, tl=0, lv="18.20.22.28", th="m25.25.55", d0=1, cal="8.40.88.140.192", DL=12, slope=427, NS=8,
        last=250, io="dafb", bar=4, al=1, tramp=1, cpre=0, stl="vo", sw21=0, qpol="nt", prio=1, stt=""):
    P = 4
    CAL = [int(x) for x in str(cal).split(".")]
    assert all(c % P == 0 for c in CAL) and DL % P == 0
    LV = [int(x) for x in str(lv).split(".")]
    TH = [int(x) for x in str(th).replace("m", "-").split(".")]
    assert len(TH) == len(LV) - 1 and all(17 <= n <= 32 for n in LV)
    deep = max(LV) > 24
    ERING = 131072
    XCH = ERING + 16384
    FLG = XCH + 8192
    LDS = FLG + 64
    o = []
    def A(s):
        for l in s.split("\n"):
            o.append(l)
    A(HEADER + f"; @launch grid=(256,1,1) block=(384,1,1) lds={LDS}" + "\n" + DOC.rstrip())
    A('.amdgcn_target "amdgcn-amd-amdhsa--gfx950"\n.text')
    if al: A(".p2align 12")
    A(f".globl {NAME}_kernel\n.p2align 8\n.type {NAME}_kernel,@function\n{NAME}_kernel:")
    if stamps: A("    s_memrealtime s[52:53]")
    A("    s_load_dwordx16 s[4:19], s[0:1], 0")
    A("    v_readfirstlane_b32 s3, v0")
    A("    v_and_b32 v4, 15, v0                     ; lane & 15")
    A("    s_cmp_ge_u32 s2, 256")
    A("    s_cbranch_scc1 L_end")
    if sw21:
        A("    s_lshr_b32 s28, s2, 1\n    s_xor_b32 s28, s28, s2\n    s_and_b32 s28, s28, 2\n    s_mul_i32 s28, s28, 3\n    s_xor_b32 s51, s2, s28")
        R = "s51"
    else:
        R = "s2"
    A(f"    v_mov_b32 v8, {FLG}")
    A("    s_lshr_b32 s3, s3, 6                     ; wave")
    A("    s_cbranch_scc0 L_loader")
    if tramp:
        A("    ; each of waves 1-4 first visits another KiB of this code so that all of it is fetched at once")
        for w in (1, 2, 3, 4):
            A(f"    s_cmp_eq_u32 s3, {w}\n    s_cbranch_scc1 L_t{w}")
    A("L_stub:")
    if cpre:
        A("    s_getpc_b64 s[28:29]\nL_pc:\n    v_subrev_u32 v6, 64, v0\n    v_min_u32 v7, (L_end - L_pc) / 64, v6")
        A("    v_lshlrev_b32 v7, 6, v7\n    global_load_dword v40, v7, s[28:29]")
    A("    v_and_b32 v6, 7, v0")
    A("    v_and_b32 v7, 0xf0, v0")
    A("    v_lshl_or_b32 v6, v6, 8, v7")
    A(f"    v_lshl_add_u32 v6, {R}, 12, v6")
    A("    s_lshr_b32 s30, s2, 3")
    A("    s_lshl_b32 s30, s30, 11")
    A("    v_and_b32 v7, 127, v0")
    A("    v_lshl_add_u32 v7, v7, 4, s30")
    A("    s_bitcmp1_b32 s3, 1")
    A("    s_waitcnt lgkmcnt(0)")
    A("    s_cselect_b64 s[30:31], s[12:13], s[10:11]")
    A("    global_load_dwordx4 v[44:47], v7, s[30:31]")
    A(f"    global_load_dwordx4 v[36:39], v6, s[4:5] {qpol}")
    A(f"    global_load_dwordx4 v[48:51], v6, s[4:5] offset:2048 {qpol}")
    A("    s_barrier")
    A("    s_cmp_eq_u32 s3, 5")
    A("    s_cbranch_scc1 L_ctl")
    A("    s_branch L_cons")
    XB = [int(c, 20) for c in io]
    assert io in ("dbfa", "bdfa", "dafb", "dafc", "adfb")
    split = io[3] == "a"
    lo, hi = sorted(XB[:2])
    STR = {lo: 1024, hi: 2048}
    imm = lambda j: (j & 1) * STR[XB[0]] + ((j >> 1) & 1) * STR[XB[1]]
    comp = lambda j: (j & 1) * (1 << XB[0]) + ((j >> 1) & 1) * (1 << XB[1]) - imm(j)
    stepbits = sum(1 << k for k in range(10, 20) if k not in XB)
    E1 = 16 if split else (1 << XB[3]) >> 7
    A("L_loader:")
    A("    v_lshl_add_u32 v7, v4, 2, v8")
    A("    v_mov_b32 v9, 0")
    A("    ds_write_b32 v7, v9")
    A("    v_lshrrev_b32 v1, 2, v0")
    A("    v_and_b32 v1, 12, v1")
    A("    v_xor_b32 v1, v1, v0")
    A("    v_lshlrev_b32 v1, 4, v1")
    A(f"    v_lshl_add_u32 v1, {R}, 20, v1")
    VO = {0: 1}
    for j in range(4):
        if comp(j) not in VO:
            VO[comp(j)] = (2, 3, 7)[len(VO) - 1]
            A(f"    v_add_u32 v{VO[comp(j)]}, {comp(j)}, v1")
    A("    v_mul_u32_u24 v6, 0x1004, v0")
    A("    v_and_b32 v6, 0xf040, v6")
    A("    v_and_b32 v10, 32, v0")
    A("    v_lshl_add_u32 v6, v10, 3, v6")
    A("    s_mov_b32 s22, 0x10000000")
    A("    s_mov_b32 s23, 0x20000")
    A("    s_mov_b32 s26, 0x10000")
    A("    s_mov_b32 s27, 0x20000")
    A("    s_mov_b64 s[42:43], 0")
    A("    s_mov_b64 s[44:45], 0")
    A("    s_mov_b32 s48, 0")
    A(f"    s_mov_b32 s51, {bar}")
    A("    s_mov_b32 m0, 0")
    if prio: A("    s_setprio 3")
    A("    v_mov_b32 v9, -2")
    if deep: A("    v_mov_b32 v17, -3")
    if tl: A("    v_mov_b32 v14, 0\n    v_mov_b32 v15, s52")
    A("    s_waitcnt lgkmcnt(0)")
    A("    s_mov_b64 s[20:21], s[6:7]")
    A("    s_mov_b64 s[24:25], s[10:11]")
    if tl == 2: A("    s_memrealtime s[60:61]\n    s_waitcnt lgkmcnt(0)\n    v_writelane_b32 v14, s60, 0\n    s_mov_b32 s62, 0")
    def cnt(p, n):
        q = 1600 + p - n
        return n - 1 + sum(2 for c in range(90, 101) if q <= 16 * c + 3 < 1600 + p)
    def body(vi, N):
        jp = (N - 1) % 8
        pv = 9 if N <= 24 else 17
        A(f"L_v{vi}:                                        ; two slots, {N} data loads in flight")
        for p in range(16):
            A(f"    s_waitcnt vmcnt({cnt(p, N)})")
            A(f"    buffer_load_dwordx4 v{VO[comp(p%4)]}, s[20:23], s43 offen offset:{imm(p%4)} nt lds")
            if p % 8 == jp: A(f"    ds_write_b32 v8, v{pv}")
            if tl == 2 and p % 4 == 2:
                A("    s_mov_b32 s63, m0\n    s_memrealtime s[60:61]\n    s_add_u32 s62, s62, 1\n    s_min_u32 m0, s62, 63\n    s_waitcnt lgkmcnt(0)\n    v_writelane_b32 v14, s60, m0\n    s_mov_b32 m0, s63")
            if p == 1:
                A("    s_lshr_b32 s46, s45, 3")
                A("    s_bitset1_b32 s46, 17")
            if p == 3:
                A("    s_mov_b32 m0, s46")
                A(f"    s_bitset1_b32 s43, {XB[2]}")
                A("    buffer_load_dwordx4 v6, s[24:27], s44 offen lds")
                A(f"    s_add_u32 m0, s46, {1024 - E1}")
                A("    s_nop 0")
                A(f"    buffer_load_dwordx4 v6, s[24:27], s44 offen offset:{E1} lds")
                A("    s_add_u32 m0, s45, 4096")
            if p == 7:
                A("    s_add_u32 m0, s45, 8192")
                A(f"    s_xor_b32 s43, s43, {(1 << XB[2]) | (1 << XB[3]):#x}")
            if p in (7, 15):
                A("    v_add_u32 v9, 1, v9")
                if deep: A("    v_add_u32 v17, 1, v17")
            if p == 8:
                A("    ds_read_b128 v[10:13], v8 offset:16")
                A("    ds_read_b32 v16, v8 offset:12")
            if p == 9:
                A(f"    s_or_b32 s42, s43, {0xfffff ^ stepbits:#x}")
                A("    s_add_u32 s42, s42, 1")
                A(f"    s_and_b32 s42, s42, {stepbits:#x}")
            if p == 10:
                A("    s_bfe_u32 s44, s42, 0xc0007")
                A("    s_add_u32 s48, s48, 2")
            if p == 11:
                A("    s_add_u32 m0, s45, 12288")
                A(f"    s_bitset1_b32 s43, {XB[2]}")
            if p == 12:
                A("    s_waitcnt lgkmcnt(1)" if jp in (1, 2, 3, 4) else "    s_waitcnt lgkmcnt(0)")
                A("    v_min3_u32 v10, v10, v11, v12")
                A("    v_min_u32 v10, v10, v13")
                A("    v_readfirstlane_b32 s50, v16")
                A("    v_readfirstlane_b32 s47, v10")
            if p == 13:
                A("    s_addk_i32 s45, 0x4000")
                A("    s_bitset0_b32 s45, 17")
                A("    s_add_u32 s47, s47, 14")
            if p == 14:
                if tl == 1:
                    A("    s_mov_b32 s63, m0\n    s_memrealtime s[60:61]\n    s_sub_u32 s62, s48, 1\n    s_lshr_b32 m0, s62, 2\n    s_waitcnt lgkmcnt(0)\n    v_writelane_b32 v14, s60, m0\n    s_mov_b32 m0, s63")
                A("    s_cmp_lt_u32 s47, s48")
                A("    s_cselect_b32 s49, 63, s50")
                A("    s_cmp_eq_u32 s48, s51")
                A("    s_cselect_b32 s49, 63, s49")
                A(f"    s_cmp_eq_u32 s49, {vi - d0}")
            if p == 15:
                A("    s_mov_b32 m0, s45")
                A("    s_mov_b32 s43, s42")
        A(f"    s_cbranch_scc1 L_v{vi}")
    body(d0, LV[d0])
    A("L_slow:")
    A("    s_cmp_eq_u32 s48, s51")
    A("    s_cbranch_scc1 L_event")
    A("L_chk:")
    A("    s_cmp_lt_u32 s47, s48")
    A("    s_cbranch_scc1 L_spin")
    others = [v for v in range(len(LV)) if v != d0]
    for v in others:
        A(f"    s_cmp_eq_u32 s50, {v - d0}")
        A(f"    s_cbranch_scc1 L_v{v}")
    A(f"    s_branch L_v{d0}")
    A("L_spin:")
    A("    ds_read_b128 v[10:13], v8 offset:16")
    A("    s_waitcnt lgkmcnt(0)")
    A("    v_min3_u32 v10, v10, v11, v12")
    A("    v_min_u32 v10, v10, v13")
    A("    v_add_u32 v10, 14, v10")
    A("    s_nop 0")
    A("    v_readfirstlane_b32 s47, v10")
    A("    s_branch L_chk")
    A("L_event:")
    A(f"    s_cmp_eq_u32 s48, {bar}")
    A("    s_cbranch_scc0 L_ev2")
    A("    s_barrier")
    A("    s_movk_i32 s51, 128")
    A(f"    s_branch L_v{d0}")
    A("L_ev2:")
    A("    s_mov_b64 s[20:21], s[8:9]")
    A("    s_mov_b64 s[24:25], s[12:13]")
    A("    s_movk_i32 s51, 256")
    A("    s_cmp_lg_u32 s48, s51")
    A("    s_cbranch_scc1 L_chk")
    A(f"    v_mov_b32 v9, {256 - (3 if deep else 2)}")
    for k in range(3 if deep else 2, -1, -1):
        A(f"    s_waitcnt vmcnt({8 * k + (0 if k < 2 else 2)})")
        A("    ds_write_b32 v8, v9")
        if k: A("    v_add_u32 v9, 1, v9")
    if tl: A("    s_memrealtime s[62:63]")
    A("    s_branch L_exit" if stamps else "    s_endpgm")
    for i, v in enumerate(others):
        if tramp and i in (0, 2): A(f"L_t{1 + i // 2}:\n    s_branch L_stub")
        body(v, LV[v])
        A("    s_branch L_slow")
    if tramp and len(others) < 3: A("L_t2:\n    s_branch L_stub")
    A("L_ctl:")
    if stamps:
        A("    s_add_u32 s60, s18, 0x200000\n    s_addc_u32 s61, s19, 0")
    else:
        A("    s_mov_b64 s[60:61], s[18:19]")
    A("    s_mov_b32 s62, 0x40000")
    A("    s_mov_b32 s63, 0x20000")
    assert NS == 8
    A("    s_lshl_b32 s30, s2, 2")
    A("    v_mov_b32 v2, s30")
    A("    s_mov_b64 exec, 1")
    m = sum(1 << (c // P) for c in CAL)
    A(f"    s_mov_b32 s32, {m & 0xffffffff:#x}")
    A(f"    s_mov_b32 s33, {m >> 32:#x}")
    A(f"    s_lshl_b64 s[34:35], s[32:33], {DL // P}")
    A(f"    s_cmp_ge_u32 s2, {NS}")
    A("    s_cselect_b64 s[32:33], 0, s[32:33]")
    A("    s_mov_b64 s[36:37], 0")
    A(f"    s_mov_b32 s48, {min(CAL)}")
    A("L_k0:")
    A("    ds_read_b32 v9, v8")
    A("    s_waitcnt lgkmcnt(0)")
    A("    v_readfirstlane_b32 s47, v9")
    A("    s_cmp_gt_i32 s48, s47")
    A("    s_cbranch_scc1 L_k0")
    A("    s_memrealtime s[44:45]")
    A("    s_lshr_b32 s38, s48, 2")
    A(f"    s_mul_i32 s39, s47, {slope}")
    A("    s_lshr_b32 s39, s39, 4")
    A("    s_bitcmp1_b64 s[32:33], s38")
    A("    s_waitcnt lgkmcnt(0)")
    A("    s_cbranch_scc0 L_knp")
    A("    s_sub_u32 s40, s44, s39")
    A("    s_lshl_b32 s46, s48, 10")
    A("    v_mov_b32 v3, s40")
    A("    buffer_store_dword v3, v2, s[60:63], s46 offen sc0 sc1")
    A("L_knp:")
    A("    s_sub_u32 s44, s44, s39")
    A("    s_cmp_eq_u32 s36, 0")
    A("    s_cbranch_scc1 L_knc")
    A("    s_sub_u32 s39, s44, s37")
    A(f"    s_mov_b32 s41, {-d0}")
    for t in TH:
        A(f"    s_cmpk_gt_i32 s39, {t}")
        A("    s_addc_u32 s41, s41, 0")
    A("    v_mov_b32 v4, s41")
    A("    ds_write_b32 v8, v4 offset:12")
    if tl: A("    s_lshr_b32 m0, s48, 2\n    s_nop 0\n    v_writelane_b32 v14, s39, m0")
    A("L_knc:")
    A("    s_bitcmp1_b64 s[34:35], s38")
    A("    s_cbranch_scc0 L_knr")
    A(f"    s_sub_u32 s46, s48, {DL}")
    A("    s_lshl_b32 s46, s46, 10")
    A("    s_buffer_load_dwordx8 s[64:71], s[60:63], s46")
    late = DL * slope // 16
    A(f"    s_addk_i32 s44, {late}")
    A("    s_mov_b64 s[40:41], 0")
    A("    s_waitcnt lgkmcnt(0)")
    for i in range(NS):
        A(f"    s_sub_u32 s42, s44, s{64+i}")
        A("    s_cmpk_lt_u32 s42, 2000")
        A("    s_cselect_b32 s42, s42, 0")
        A("    s_addc_u32 s41, s41, 0")
        A("    s_add_u32 s40, s40, s42")
    A("    s_lshr_b32 s40, s40, 3")
    A("    s_sub_u32 s40, s44, s40")
    A(f"    s_cmp_ge_u32 s41, {NS * 3 // 4}")
    A("    s_cselect_b32 s37, s40, s37")
    A("    s_cselect_b32 s36, 1, s36")
    A("L_knr:")
    A(f"    s_add_u32 s48, s48, {P}")
    A(f"    s_cmpk_le_u32 s48, {last}")
    A("    s_cbranch_scc1 L_k0")
    if stamps: A("    s_mov_b64 exec, -1\n    s_branch L_exit")
    else: A("    s_endpgm")
    if al: A(".p2align 12")
    if tramp: A("L_t3:\n    s_branch L_stub")
    A("L_cons:")
    A("    s_and_b32 s28, s3, 3")
    A(f"    s_lshl_b32 s40, {R}, 20")
    A(f"    s_lshl_b32 s41, {R}, 12")
    for ch in stl:
        reg, off, what = {"v": ("s[8:9]", "s40", "V"), "o": ("s[14:15]", "s41", "output")}[ch]
        A(f"    s_load_dword s64, {reg}, {off}")
    A("    s_add_u32 s36, s14, s41")
    A("    s_addc_u32 s37, s15, 0")
    A("    s_movk_i32 s38, 2048")
    A("    s_mov_b32 s39, 0x20000")
    A("    v_and_b32 v5, 0xf0, v0")
    A("    v_lshl_or_b32 v6, v4, 8, v5")
    A("    v_bfe_u32 v5, v0, 4, 2                   ; g")
    A("    v_lshrrev_b32 v7, 2, v4")
    A("    v_xor_b32 v1, s28, v7")
    A("    v_lshlrev_b32 v1, 6, v1")
    A("    v_lshl_add_u32 v1, v7, 8, v1")
    A("    v_and_b32 v7, 3, v4")
    A("    v_lshl_add_u32 v1, v7, 4, v1")
    A("    v_lshl_add_u32 v1, v5, 11, v1")
    A("    v_and_b32 v2, 63, v0")
    A("    v_lshlrev_b32 v2, 4, v2")
    A(f"    v_add_u32 v3, {XCH}, v2")
    A(f"    v_add_u32 v2, {ERING}, v2")
    A("    v_lshl_add_u32 v7, s28, 2, v8")
    A("    v_mov_b32 v4, v8")
    A("    v_mov_b32 v5, 1")
    A("    s_lshl_b32 s30, s28, 10")
    A("    s_mov_b32 s49, 0x3db504f3                ; 128^-0.5")
    A("    s_mov_b32 s50, 0x3fb8aa3b                ; log2(e)")
    A("    s_mov_b32 s48, 0")
    A("    s_mov_b32 s47, 0")
    A("    s_waitcnt lgkmcnt(0)")
    def phase(tag):
        for i in range(0, 8, 2): A(f"    v_mov_b64 v[{12+i}:{13+i}], 0")
        A(f"L_c{tag}:")
        A("    s_and_b32 s45, s48, 15")
        A("    v_lshl_add_u32 v10, s45, 13, v1")
        if split:
            A("    s_mul_i32 s45, s45, 1032\n    s_and_b32 s45, s45, 0x3808\n    v_add_u32 v11, s45, v2")
        else:
            A("    v_lshl_add_u32 v11, s45, 10, v2")
        A("    s_add_u32 s48, s48, 1")
        A("    v_mov_b32 v32, s48")
        A("    s_cmp_le_i32 s48, s47")
        A(f"    s_cbranch_scc1 L_r{tag}")
        A(f"L_p{tag}:")
        A("    ds_read_b32 v9, v8")
        A("    s_waitcnt lgkmcnt(0)")
        A("    v_readfirstlane_b32 s47, v9")
        A("    s_cmp_gt_i32 s48, s47")
        A(f"    s_cbranch_scc1 L_p{tag}")
        A(f"L_r{tag}:")
        A("    ds_read2st64_b64 v[20:23], v11 offset1:2" if split else "    ds_read_b128 v[20:23], v11")
        for t in range(2):
            for h in range(2):
                r = 24 + 4 * t + 2 * h
                A(f"    ds_read_b64_tr_b16 v[{r}:{r+1}], v10 offset:{h*1024 + t*8}")
        A("    ds_write_b32 v7, v32 offset:16")
        A("    s_and_b32 s45, s48, 63")
        for t in range(2):
            A(f"    s_waitcnt lgkmcnt({3 - 2*t})")
            a, b = "v[20:23]", f"v[{24+4*t}:{27+4*t}]"
            if tag == "k": a, b = b, a
            A(f"    v_mfma_f32_16x16x32_bf16 v[{12+4*t}:{15+4*t}], {a}, {b}, v[{12+4*t}:{15+4*t}]")
        A(f"    s_cbranch_scc1 L_c{tag}")
    A("L_bk:")
    phase("k")
    A("    s_nop 5")
    for i in range(4): A(f"    v_cvt_pk_bf16_f32 v{20+i}, v{12+2*i}, v{13+2*i}")
    A("    s_waitcnt vmcnt(0)")
    A("    v_add_u32 v10, s30, v3")
    A("    v_mfma_f32_16x16x32_bf16 v[28:31], v[20:23], v[36:39], 0")
    A("    s_nop 7")
    A("    ds_write_b128 v10, v[28:31]")
    A("    ds_add_u32 v4, v5 offset:4")
    A("L_ps:")
    A("    ds_read_b32 v9, v4 offset:4")
    A("    s_waitcnt lgkmcnt(0)")
    A("    v_readfirstlane_b32 s45, v9")
    A("    s_cmpk_lt_u32 s45, 256")
    A("    s_cbranch_scc1 L_ps")
    for w in range(4): A(f"    ds_read_b128 v[{12+4*w}:{15+4*w}], v3 offset:{w*1024}")
    A("    v_add_u32 v3, 4096, v3")
    A("    v_add_u32 v4, 4, v4")
    A("    v_mov_b64 v[36:37], v[48:49]")
    A("    v_mov_b64 v[38:39], v[50:51]")
    A("    v_mov_b64 v[34:35], v[44:45]")
    A("    s_waitcnt lgkmcnt(0)")
    for i in (0, 2):
        A(f"    v_pk_add_f32 v[{12+i}:{13+i}], v[{12+i}:{13+i}], v[{16+i}:{17+i}]")
        A(f"    v_pk_add_f32 v[{20+i}:{21+i}], v[{20+i}:{21+i}], v[{24+i}:{25+i}]")
    for i in (0, 2):
        A(f"    v_pk_add_f32 v[{28+i}:{29+i}], v[{12+i}:{13+i}], v[{20+i}:{21+i}]")
    def rnd():
        A("    v_cvt_pk_bf16_f32 v24, v28, v29")
        A("    v_cvt_pk_bf16_f32 v25, v30, v31")
        A("    v_lshlrev_b32 v28, 16, v24")
        A("    v_and_b32 v29, 0xffff0000, v24")
        A("    v_lshlrev_b32 v30, 16, v25")
        A("    v_and_b32 v31, 0xffff0000, v25")
    rnd()
    for i in range(4): A(f"    v_mul_f32 v{28+i}, s49, v{28+i}")
    rnd()
    def xreduce(op):
        for sw in ("16", "32"):
            A("    v_mov_b32 v25, v24")
            A("    s_nop 1")
            A(f"    v_permlane{sw}_swap_b32 v24, v25")
            A("    s_nop 1")
            A(f"    {op} v24, v24, v25")
    A("    v_max3_f32 v24, v28, v29, v30")
    A("    v_max_f32 v24, v24, v31")
    xreduce("v_max_f32")
    for i in range(4): A(f"    v_sub_f32 v{28+i}, v{28+i}, v24")
    for i in range(4): A(f"    v_mul_f32 v{28+i}, s50, v{28+i}")
    for i in range(4): A(f"    v_exp_f32 v{28+i}, v{28+i}")
    A("    s_nop 0")
    A("    v_add_f32 v24, v28, v29")
    A("    v_add_f32 v25, v30, v31")
    A("    v_add_f32 v24, v24, v25")
    xreduce("v_add_f32")
    A("    v_rcp_f32 v24, v24")
    A("    s_nop 0")
    for i in range(4): A(f"    v_mul_f32 v{28+i}, v24, v{28+i}")
    A("    v_cvt_pk_bf16_f32 v44, v28, v29")
    A("    v_cvt_pk_bf16_f32 v45, v30, v31")
    A("    s_cmpk_lt_u32 s48, 128")
    A("    s_cbranch_scc1 L_bk")
    if tramp: A("    s_branch L_bv\nL_t4:\n    s_branch L_stub")
    A("L_bv:")
    phase("v")
    A("    s_nop 5")
    for i in range(4): A(f"    v_cvt_pk_bf16_f32 v{20+i}, v{12+2*i}, v{13+2*i}")
    A("    v_mfma_f32_16x16x16_bf16 v[24:27], v[20:21], v[34:35], 0")
    A("    s_nop 0")
    A("    v_mfma_f32_16x16x16_bf16 v[28:31], v[22:23], v[34:35], 0")
    A("    s_nop 5")
    for i in range(4): A(f"    v_cvt_pk_bf16_f32 v{40+i}, v{24+2*i}, v{25+2*i}")
    A("    buffer_store_dwordx4 v[40:43], v6, s[36:39], 0 offen")
    A("    s_add_u32 s36, s36, 2048")
    A("    s_addc_u32 s37, s37, 0")
    A("    v_mov_b64 v[34:35], v[44:45]")
    A("    s_cmpk_lt_u32 s48, 256")
    A("    s_cbranch_scc1 L_bv")
    if stamps:
        A("L_exit:")
        A("    s_waitcnt vmcnt(0)")
        A("    s_memrealtime s[54:55]")
        A("    s_mul_i32 s58, s2, 6\n    s_add_u32 s58, s58, s3\n    s_lshl_b32 s58, s58, 4\n    v_mov_b32 v1, s58")
        A("    s_waitcnt lgkmcnt(0)")
        if tl:
            A("    v_writelane_b32 v15, s62, 2\n    v_writelane_b32 v15, s54, 3")
            A("    v_and_b32 v2, 63, v0\n    v_lshlrev_b32 v2, 2, v2")
            A("    s_lshl_b32 s60, s58, 5\n    s_add_u32 s60, s60, 0x100000\n    v_add_u32 v2, s60, v2")
            A("    global_store_dword v2, v14, s[18:19]")
            A("    global_store_dword v2, v15, s[18:19] offset:256")
        A("    s_getreg_b32 s59, hwreg(HW_REG_XCC_ID, 0, 4)")
        A("    s_lshl_b32 s59, s59, 28\n    s_or_b32 s55, s55, s59")
        for i in range(4): A(f"    v_mov_b32 v{8+i}, s{52+i}")
        A("    s_mov_b64 exec, 1")
        A("    global_store_dwordx4 v1, v[8:11], s[18:19]")
    A("L_end:")
    A("    s_endpgm")
    A(f""".section .rodata,"a"
.p2align 6
.amdhsa_kernel {NAME}_kernel
  .amdhsa_next_free_vgpr 52
  .amdhsa_next_free_sgpr 72
  .amdhsa_accum_offset 52
  .amdhsa_group_segment_fixed_size 0
  .amdhsa_kernarg_size 64
  .amdhsa_user_sgpr_count 2
  .amdhsa_user_sgpr_kernarg_segment_ptr 1
  .amdhsa_system_sgpr_workgroup_id_x 1
.end_amdhsa_kernel""")
    return "\n".join(o) + "\n"

if __name__ == "__main__":
    outdir = sys.argv[1]
    for spec in sys.argv[2:]:
        name, kv = spec.split(":")
        d = {}
        for x in kv.split(","):
            if not x: continue
            k, v = x.split("=")
            d[k] = int(v) if v.lstrip("-").isdigit() else v.replace("+", " ")
        open(f"{outdir}/{name}.s", "w").write(gen(**d))
```
